```python
import torch

def _softmax(x, axis=-1):
    return torch.softmax(x, dim=axis)
def _gelu(x):
    return torch.nn.functional.gelu(x, approximate="tanh")
def _silu(x):
    return torch.nn.functional.silu(x)
def _sigmoid(x):
    return torch.sigmoid(x)
def _layernorm(x, axis=-1, eps=1e-5):
    m = x.mean(dim=axis, keepdim=True)
    v = x.var(dim=axis, keepdim=True, unbiased=False)
    return (x - m) / torch.sqrt(v + eps)
def _scatter_add(tgt, idx, src, axis=0):
    return tgt.clone().index_add_(axis, idx, src)
def _segment_sum(src, seg, n):
    out = torch.zeros((n,) + src.shape[1:], dtype=src.dtype)
    return out.index_add_(0, seg, src)
def _pad(x, pw):
    flat = tuple(v for pair in reversed(pw) for v in pair)
    return torch.nn.functional.pad(x, flat)

kernel_name = 'recurrent_scan__ssm_conv_s5__dense_activation_silu__prompt'

def setup_inputs():

    _w = (lambda a: (lambda t: t.to(torch.bfloat16) if t.is_floating_point() else t)(torch.as_tensor(a)))
    def _A_setup():
        B, S, D = 1, 2048, 640
        P = D
        Lambda_re = -0.5 * (lambda _x: torch.exp(torch.as_tensor(_x)))((lambda *s: torch.randn(*s, dtype=torch.bfloat16) * 0.8)(P))
        Lambda_im = (lambda *s: torch.randn(*s, dtype=torch.bfloat16) * 0.8)(P) * 1.0
        B_re = (lambda *s: torch.randn(*s, dtype=torch.bfloat16) * 0.8)(P, D) * (D ** -0.5)
        B_im = (lambda *s: torch.randn(*s, dtype=torch.bfloat16) * 0.8)(P, D) * (D ** -0.5)
        C_re = (lambda *s: torch.randn(*s, dtype=torch.bfloat16) * 0.8)(D, P) * (P ** -0.5)
        C_im = (lambda *s: torch.randn(*s, dtype=torch.bfloat16) * 0.8)(D, P) * (P ** -0.5)
        log_dt = (lambda *s: torch.randn(*s, dtype=torch.bfloat16) * 0.8)(P) * 0.3 - 2.0
        Dskip = (lambda *s: torch.randn(*s, dtype=torch.bfloat16) * 0.4)(D)
        return {
            "x": _w((lambda *s: torch.randn(*s, dtype=torch.bfloat16) * 0.05)(B, S, D)),
            "Lambda_re": _w(Lambda_re),
            "Lambda_im": _w(Lambda_im),
            "B_re": _w(B_re),
            "B_im": _w(B_im),
            "C_re": _w(C_re),
            "C_im": _w(C_im),
            "log_dt": _w(log_dt),
            "Dskip": _w(Dskip),
        }
    _A_in = _A_setup()

    def _B_setup():
        B, S, D, F = 1, 2048, 640, 1536
        return {
            "x": _w((lambda *s: torch.randn(*s, dtype=torch.bfloat16) * 0.05)(B, S, D)),
            "w1": _w((lambda *s: torch.randn(*s, dtype=torch.bfloat16) * 0.8)(D, F) * (D ** -0.5)),
            "w2": _w((lambda *s: torch.randn(*s, dtype=torch.bfloat16) * 0.1)(F, D) * (F ** -0.5)),
        }
    _B_in = _B_setup()

    return {
        "A_x": _A_in["x"],
        "A_Lambda_re": _A_in["Lambda_re"],
        "A_Lambda_im": _A_in["Lambda_im"],
        "A_B_re": _A_in["B_re"],
        "A_B_im": _A_in["B_im"],
        "A_C_re": _A_in["C_re"],
        "A_C_im": _A_in["C_im"],
        "A_log_dt": _A_in["log_dt"],
        "A_Dskip": _A_in["Dskip"],
        "B_x": _B_in["x"],
        "B_w1": _B_in["w1"],
        "B_w2": _B_in["w2"],
    }

def reference(A_x, A_Lambda_re, A_Lambda_im, A_B_re, A_B_im, A_C_re, A_C_im, A_log_dt, A_Dskip, B_x, B_w1, B_w2):
    def _A_ref(x, Lambda_re, Lambda_im, B_re, B_im, C_re, C_im, log_dt, Dskip):
        Bsz, L, H = x.shape
        Lam = Lambda_re + 1j * Lambda_im
        Bmat = B_re + 1j * B_im
        Cmat = C_re + 1j * C_im
        dt = torch.exp(log_dt)
        Lam_bar = torch.exp(dt * Lam)
        B_bar = ((Lam_bar - 1.0) / Lam)[:, None] * Bmat
        Bu = torch.einsum("bld,pd->blp", x + 0j, B_bar)
        h = torch.zeros_like(Bu[:, 0, :])
        hs = []
        for t in range(L):
            h = Lam_bar[None, :] * h + Bu[:, t, :]
            hs.append(h)
        hseq = torch.stack(hs, 1)
        y = 2.0 * torch.einsum("blp,dp->bld", hseq, Cmat).real + x * Dskip[None, None, :]
        return y

    def _B_ref(x, w1, w2):
        h = torch.einsum("bsd,df->bsf", x, w1)
        h = _silu(h)
        out = torch.einsum("bsf,fd->bsd", h, w2)
        return out

    x = A_x
    xn = _layernorm(x, axis=-1)
    s = _A_ref(xn, A_Lambda_re, A_Lambda_im, A_B_re, A_B_im, A_C_re, A_C_im, A_log_dt, A_Dskip)
    g = _silu(_B_ref(xn, B_w1, B_w2))
    return x + s * g
```

```python
import sys, struct
NAME = "recurrent_scan__ssm_conv_s5__dense_activation_silu__prompt"

WS_XN    = 0x000000
WS_W1T   = 0x280000
WS_W2T   = 0x460000
WS_CONST = 0x640000
WS_AGG   = 0x650000
WS_H     = 0x680000
WS_H1    = 0xB80000
SZ_XN = 2048*640*2; SZ_W = 640*1536*2; SZ_CONST = 640*64; SZ_AGG = 8*16*80*16
SZ_H = 2048*1280*2; SZ_H1 = 2048*1536*2

KA = dict(x=0, lre=8, lim=16, bre=24, bim=32, cre=40, cim=48, ldt=56, dsk=64, bx=72, w1=80, w2=88, out=96, dbg=104, ws=112)

def f2u(f):
    return struct.unpack("<I", struct.pack("<f", f))[0]
def fhex(f):
    return "0x%08x" % f2u(f)

class A:
    def __init__(s):
        s.L = []
    def __call__(s, t):
        for l in t.strip("\n").split("\n"):
            l = l.strip()
            if l: s.L.append("    " + l)
    def lab(s, l): s.L.append(l + ":")
    def c(s, t): s.L.append("    ; " + t)
    def text(s): return "\n".join(s.L) + "\n"

def v(i, n=1):
    return "v%d" % i if n == 1 else "v[%d:%d]" % (i, i + n - 1)
def sr(i, n=1):
    return "s%d" % i if n == 1 else "s[%d:%d]" % (i, i + n - 1)

def srd(a, d, base, off, size):
    if off:
        a("s_add_u32 s%d, s%d, 0x%x" % (d, base, off))
        a("s_addc_u32 s%d, s%d, 0" % (d + 1, base + 1))
    else:
        a("s_mov_b32 s%d, s%d" % (d, base))
        a("s_mov_b32 s%d, s%d" % (d + 1, base + 1))
    a("s_and_b32 s%d, s%d, 0xffff" % (d + 1, d + 1))
    a("s_mov_b32 s%d, 0x%x" % (d + 2, size))
    a("s_mov_b32 s%d, 0x00020000" % (d + 3))

def wave_sum(a, x, t):
    for p in ["quad_perm:[1,0,3,2]", "quad_perm:[2,3,0,1]", "row_half_mirror", "row_mirror"]:
        a("s_nop 1")
        a("v_add_f32_dpp v%d, v%d, v%d %s row_mask:0xf bank_mask:0xf" % (t, x, x, p))
        a("v_mov_b32 v%d, v%d" % (x, t))
    a("s_nop 1")
    for i in range(4):
        a("v_readlane_b32 s%d, v%d, %d" % (20 + i, x, 16 * i))
    a("s_nop 1")
    a("v_mov_b32 v%d, s20" % x)
    a("v_add_f32 v%d, s21, v%d" % (x, x))
    a("v_mov_b32 v%d, s22" % t)
    a("v_add_f32 v%d, s23, v%d" % (t, t))
    a("v_add_f32 v%d, v%d, v%d" % (x, x, t))

def div_refine(a, q, n, d, r, t):
    a("v_mul_f32 v%d, v%d, v%d" % (q, n, r))
    a("v_fma_f32 v%d, -v%d, v%d, v%d" % (t, q, d, n))
    a("v_fma_f32 v%d, v%d, v%d, v%d" % (q, t, r, q))

def bf16r(a, d, x):
    a("v_cvt_pk_bf16_f32 v%d, v%d, v%d" % (d, x, x))
    a("v_lshlrev_b32 v%d, 16, v%d" % (d, d))

def exp_acc(a, d, x, t0, t1):
    a("v_mul_f32 v%d, s30, v%d" % (t0, x))
    a("v_fma_f32 v%d, v%d, s30, -v%d" % (t1, x, t0))
    a("v_fma_f32 v%d, v%d, s31, v%d" % (t1, x, t1))
    a("v_exp_f32 v%d, v%d" % (d, t0))
    a("v_mul_f32 v%d, s32, v%d" % (t1, t1))
    a("v_fma_f32 v%d, v%d, v%d, v%d" % (d, d, t1, d))

def cmul(a, dr, di, ar, ai, br, bi):
    a("v_mul_f32 v%d, v%d, v%d" % (dr, ar, br))
    a("v_fma_f32 v%d, -v%d, v%d, v%d" % (dr, ai, bi, dr))
    a("v_mul_f32 v%d, v%d, v%d" % (di, ar, bi))
    a("v_fma_f32 v%d, v%d, v%d, v%d" % (di, ai, br, di))

K0_LN = 512; K0_T1 = K0_LN + 240; K0_T2 = K0_T1 + 240; K0_C = K0_T2 + 3; K0_Z = K0_C + 40
def gen_k0(a):
    a.lab("k0_kernel")
    a("s_cmp_ge_u32 s2, %d" % K0_Z)
    a("s_cbranch_scc1 K0_END")
    a("s_load_dwordx2 s[6:7], s[0:1], %d" % KA["ws"])
    a("s_cmp_ge_u32 s2, %d" % K0_LN)
    a("s_cbranch_scc1 K0_NOTLN")
    a("s_load_dwordx2 s[4:5], s[0:1], %d" % KA["x"])
    a("v_lshrrev_b32 v1, 6, v0")
    a("v_and_b32 v2, 63, v0")
    a("s_lshl_b32 s3, s2, 2")
    a("v_add_u32 v1, s3, v1")
    a("v_mul_u32_u24 v1, 1280, v1")
    a("v_lshlrev_b32 v3, 2, v2")
    a("v_add_u32 v3, v3, v1")
    a("v_add_u32 v3, 1024, v3")
    a("v_lshlrev_b32 v2, 4, v2")
    a("v_add_u32 v2, v2, v1")
    a("s_waitcnt lgkmcnt(0)")
    srd(a, 8, 4, 0, SZ_XN)
    srd(a, 12, 6, WS_XN, SZ_XN)
    a("buffer_load_dwordx4 v[4:7], v2, s[8:11], 0 offen")
    a("buffer_load_dword v8, v3, s[8:11], 0 offen")
    a("s_waitcnt vmcnt(0)")
    for i in range(5):
        a("v_lshlrev_b32 v%d, 16, v%d" % (10 + 2 * i, 4 + i))
        a("v_and_b32 v%d, 0xffff0000, v%d" % (11 + 2 * i, 4 + i))
    a("v_add_f32 v20, v10, v11")
    a("v_add_f32 v21, v12, v13")
    a("v_add_f32 v22, v14, v15")
    a("v_add_f32 v23, v16, v17")
    a("v_add_f32 v24, v18, v19")
    a("v_add_f32 v20, v20, v21")
    a("v_add_f32 v22, v22, v23")
    a("v_add_f32 v20, v20, v22")
    a("v_add_f32 v20, v20, v24")
    wave_sum(a, 20, 21)
    a("v_mov_b32 v26, %s" % fhex(640.0))
    a("v_mov_b32 v27, %s" % fhex(1.0 / 640.0))
    div_refine(a, 22, 20, 26, 27, 21)
    a("v_mov_b32 v20, 0")
    for i in range(10):
        a("v_sub_f32 v21, v%d, v22" % (10 + i))
        a("v_fma_f32 v20, v21, v21, v20")
    wave_sum(a, 20, 21)
    div_refine(a, 23, 20, 26, 27, 21)
    bf16r(a, 22, 22)
    bf16r(a, 23, 23)
    a("v_add_f32 v23, %s, v23" % fhex(1e-5))
    bf16r(a, 23, 23)
    a("v_sqrt_f32 v24, v23")
    a("s_nop 0")
    a("v_rcp_f32 v25, v24")
    a("v_fma_f32 v21, -v24, v24, v23")
    a("v_mul_f32 v25, 0.5, v25")
    a("v_fma_f32 v24, v21, v25, v24")
    bf16r(a, 24, 24)
    a("v_rcp_f32 v25, v24")
    a("s_nop 0")
    for i in range(5):
        a("v_sub_f32 v20, v%d, v22" % (10 + 2 * i))
        a("v_sub_f32 v21, v%d, v22" % (11 + 2 * i))
        a("v_cvt_pk_bf16_f32 v20, v20, v21")
        a("v_and_b32 v21, 0xffff0000, v20")
        a("v_lshlrev_b32 v20, 16, v20")
        div_refine(a, 26, 20, 24, 25, 28)
        div_refine(a, 27, 21, 24, 25, 28)
        a("v_cvt_pk_bf16_f32 v%d, v26, v27" % (4 + i))
    a("buffer_store_dwordx4 v[4:7], v2, s[12:15], 0 offen")
    a("buffer_store_dword v8, v3, s[12:15], 0 offen")
    a("s_endpgm")
    a.lab("K0_NOTLN")
    a("s_cmp_ge_u32 s2, %d" % K0_T2)
    a("s_cbranch_scc1 K0_NOTTR")
    a("s_cmp_ge_u32 s2, %d" % K0_T1)
    a("s_cbranch_scc1 K0_TR2")
    a("s_load_dwordx2 s[4:5], s[0:1], %d" % KA["w1"])
    a("s_sub_u32 s3, s2, %d" % K0_LN)
    a("s_mul_hi_u32 s18, s3, 0x%x" % ((2**32 + 23) // 24))
    a("s_mul_i32 s19, s18, 24")
    a("s_sub_u32 s19, s3, s19")
    a("s_mov_b32 s16, 3072")
    a("s_mov_b32 s17, 1280")
    a("s_waitcnt lgkmcnt(0)")
    srd(a, 12, 6, WS_W1T, SZ_W)
    a("s_branch K0_TRGO")
    a.lab("K0_TR2")
    a("s_load_dwordx2 s[4:5], s[0:1], %d" % KA["w2"])
    a("s_sub_u32 s3, s2, %d" % K0_T1)
    a("s_mul_hi_u32 s18, s3, 0x%x" % ((2**32 + 9) // 10))
    a("s_mul_i32 s19, s18, 10")
    a("s_sub_u32 s19, s3, s19")
    a("s_mov_b32 s16, 1280")
    a("s_mov_b32 s17, 3072")
    a("s_waitcnt lgkmcnt(0)")
    srd(a, 12, 6, WS_W2T, SZ_W)
    a.lab("K0_TRGO")
    srd(a, 8, 4, 0, SZ_W)
    a("s_lshl_b32 s18, s18, 6")
    a("s_lshl_b32 s19, s19, 6")
    a("v_lshrrev_b32 v1, 3, v0")
    a("v_and_b32 v2, 7, v0")
    a("v_add_u32 v3, s18, v1")
    a("v_mul_lo_u32 v3, v3, s16")
    a("v_lshlrev_b32 v4, 4, v2")
    a("v_add_u32 v3, v3, v4")
    a("s_lshl_b32 s3, s19, 1")
    a("v_add_u32 v3, s3, v3")
    a("s_lshl_b32 s3, s16, 5")
    a("buffer_load_dwordx4 v[8:11], v3, s[8:11], 0 offen")
    a("buffer_load_dwordx4 v[12:15], v3, s[8:11], s3 offen")
    a("v_lshlrev_b32 v5, 7, v1")
    a("v_add_u32 v5, v5, v4")
    a("s_waitcnt vmcnt(0)")
    a("ds_write_b128 v5, v[8:11]")
    a("ds_write_b128 v5, v[12:15] offset:4096")
    a("s_waitcnt lgkmcnt(0)")
    a("s_barrier")
    a("v_lshrrev_b32 v1, 2, v0")
    a("v_and_b32 v2, 3, v0")
    a("v_lshlrev_b32 v5, 11, v2")
    a("v_lshl_add_u32 v5, v1, 1, v5")
    for j in range(16):
        a("ds_read_u16 v%d, v5 offset:%d" % (8 + j, 128 * j))
    a("v_add_u32 v3, s19, v1")
    a("v_mul_lo_u32 v3, v3, s17")
    a("v_lshlrev_b32 v4, 5, v2")
    a("v_add_u32 v3, v3, v4")
    a("s_lshl_b32 s3, s18, 1")
    a("v_add_u32 v3, s3, v3")
    a("s_waitcnt lgkmcnt(0)")
    for j in range(8):
        a("v_lshl_or_b32 v%d, v%d, 16, v%d" % (24 + j, 9 + 2 * j, 8 + 2 * j))
    a("buffer_store_dwordx4 v[24:27], v3, s[12:15], 0 offen")
    a("buffer_store_dwordx4 v[28:31], v3, s[12:15], 0 offen offset:16")
    a("s_endpgm")
    a.lab("K0_NOTTR")
    a("s_cmp_ge_u32 s2, %d" % K0_C)
    a("s_cbranch_scc1 K0_ZERO")
    a("s_load_dwordx4 s[16:19], s[0:1], %d" % KA["lre"])
    a("s_load_dwordx2 s[4:5], s[0:1], %d" % KA["ldt"])
    a("s_sub_u32 s3, s2, %d" % K0_T2)
    a("s_lshl_b32 s3, s3, 8")
    a("v_add_u32 v1, s3, v0")
    a("v_lshlrev_b32 v2, 1, v1")
    a("s_waitcnt lgkmcnt(0)")
    srd(a, 8, 16, 0, 1280)
    srd(a, 12, 18, 0, 1280)
    srd(a, 24, 4, 0, 1280)
    srd(a, 36, 6, WS_CONST, SZ_CONST)
    a("buffer_load_ushort v3, v2, s[8:11], 0 offen")
    a("buffer_load_ushort v4, v2, s[12:15], 0 offen")
    a("buffer_load_ushort v5, v2, s[24:27], 0 offen")
    L2E = 1.4426950408889634
    hi = struct.unpack("<f", struct.pack("<f", L2E))[0]
    a("s_mov_b32 s30, %s" % fhex(hi))
    a("s_mov_b32 s31, %s" % fhex(L2E - hi))
    a("s_mov_b32 s32, %s" % fhex(0.6931471805599453))
    I2P = 0.15915494309189535
    hi2 = struct.unpack("<f", struct.pack("<f", I2P))[0]
    a("s_mov_b32 s33, %s" % fhex(hi2))
    a("s_mov_b32 s34, %s" % fhex(I2P - hi2))
    a("s_waitcnt vmcnt(0)")
    a("v_lshlrev_b32 v3, 16, v3")
    a("v_lshlrev_b32 v4, 16, v4")
    a("v_lshlrev_b32 v5, 16, v5")
    exp_acc(a, 6, 5, 7, 8)
    bf16r(a, 6, 6)
    a("v_mul_f32 v7, v6, v3")
    a("v_mul_f32 v8, v6, v4")
    exp_acc(a, 9, 7, 10, 11)
    a("v_mul_f32 v10, s33, v8")
    a("v_fma_f32 v11, v8, s33, -v10")
    a("v_fma_f32 v11, v8, s34, v11")
    a("v_fract_f32 v10, v10")
    a("v_add_f32 v10, v10, v11")
    a("v_cos_f32 v12, v10")
    a("v_sin_f32 v13, v10")
    a("s_nop 0")
    a("v_mul_f32 v18, v9, v12")
    a("v_mul_f32 v19, v9, v13")
    a("v_add_f32 v10, -1.0, v18")
    a("v_mul_f32 v11, v3, v3")
    a("v_fma_f32 v11, v4, v4, v11")
    a("v_rcp_f32 v12, v11")
    a("v_mul_f32 v13, v10, v3")
    a("v_fma_f32 v13, v19, v4, v13")
    a("v_mul_f32 v14, v19, v3")
    a("v_fma_f32 v14, -v10, v4, v14")
    div_refine(a, 16, 13, 11, 12, 15)
    div_refine(a, 17, 14, 11, 12, 15)
    cmul(a, 20, 21, 18, 19, 18, 19)
    cmul(a, 22, 23, 20, 21, 18, 19)
    cmul(a, 24, 25, 20, 21, 20, 21)
    cmul(a, 28, 29, 24, 25, 24, 25)
    cmul(a, 26, 27, 28, 29, 28, 29)
    cmul(a, 28, 29, 26, 27, 26, 27)
    cmul(a, 30, 31, 28, 29, 28, 29)
    cmul(a, 26, 27, 30, 31, 30, 31)
    a("v_lshlrev_b32 v2, 6, v1")
    a("buffer_store_dwordx4 v[16:19], v2, s[36:39], 0 offen")
    a("buffer_store_dwordx4 v[20:23], v2, s[36:39], 0 offen offset:16")
    a("buffer_store_dwordx4 v[24:27], v2, s[36:39], 0 offen offset:32")
    a("s_endpgm")
    a.lab("K0_ZERO")
    a("s_sub_u32 s3, s2, %d" % K0_C)
    a("s_lshl_b32 s3, s3, 8")
    a("v_add_u32 v1, s3, v0")
    a("v_lshlrev_b32 v1, 4, v1")
    a("v_mov_b32 v4, 0")
    a("v_mov_b32 v5, 0")
    a("v_mov_b32 v6, 0")
    a("v_mov_b32 v7, 0")
    a("s_waitcnt lgkmcnt(0)")
    srd(a, 8, 6, WS_AGG, SZ_AGG)
    a("buffer_store_dwordx4 v[4:7], v1, s[8:11], 0 offen")
    a.lab("K0_END")
    a("s_endpgm")

def desc(name, vg, sg=102, lds_static=0):
    acc = (vg + 3) // 4 * 4
    return """.amdhsa_kernel %s
  .amdhsa_next_free_vgpr %d
  .amdhsa_next_free_sgpr %d
  .amdhsa_accum_offset %d
  .amdhsa_group_segment_fixed_size 0
  .amdhsa_kernarg_size 120
  .amdhsa_user_sgpr_count 2
  .amdhsa_user_sgpr_kernarg_segment_ptr 1
  .amdhsa_system_sgpr_workgroup_id_x 1
  .amdhsa_float_denorm_mode_32 3
.end_amdhsa_kernel
""" % (name, vg, sg, acc)
```

```python
from gen import *

K1_CB = 0
K1_ST = 5120
STG = 24576
K1_LDS = K1_ST + 3 * STG
K1_T = 5120; K1_P = 25600; K1_O2 = 46080
ACC = 12; B0 = 108; B1 = 156; AR = 204

def k1_main(a, NT, ssm):
    nd = NT // 2
    stepJ = 16 * 1280 if ssm else 32 * 1280
    def acc(rt, ct): return ACC + (rt * NT + ct) * 4
    def dma(it):
        st = it % 3
        for j in range(nd):
            a("s_add_u32 m0, s32, %d" % (K1_ST + st * STG + 4 * j * 1024))
            a("s_add_u32 s35, s31, %d" % (j * stepJ + it * 128))
            a("buffer_load_dwordx4 v1, s[12:15], s35 offen lds")
    def aload(it):
        base = AR + (it % 3) * 16
        for rt in range(2):
            for ks in range(2):
                a("buffer_load_dwordx4 %s, v1, s[8:11], s%d offen offset:%d" % (v(base + (rt * 2 + ks) * 4, 4), 33 + rt, it * 128 + ks * 64))
    def bread(it, ks, dst):
        st = it % 3
        for ct in range(NT):
            off = (ct * 2 + ks) * 1024 + (st * STG if st < 2 else 0)
            a("ds_read_b128 %s, v%d offset:%d" % (v(dst + 4 * ct, 4), 2 if st < 2 else 3, off))
    def mfmas(it, ks, bset):
        for ct in range(NT):
            for rt in range(2):
                Areg = v(AR + (it % 3) * 16 + (rt * 2 + ks) * 4, 4); Breg = v(bset + 4 * ct, 4)
                C = v(acc(rt, ct), 4)
                src = "0" if (it == 0 and ks == 0) else C
                if ssm: a("v_mfma_f32_16x16x32_bf16 %s, %s, %s, %s" % (C, Areg, Breg, src))
                else:   a("v_mfma_f32_16x16x32_bf16 %s, %s, %s, %s" % (C, Breg, Areg, src))
    aload(0); dma(0); aload(1); dma(1); dma(2)
    a("s_waitcnt vmcnt(%d)" % (4 + 2 * nd))
    a("s_barrier")
    bread(0, 0, B0)
    for it in range(10):
        bread(it, 1, B1)
        a("s_waitcnt lgkmcnt(%d)" % NT)
        mfmas(it, 0, B0)
        if it < 9:
            a("s_waitcnt vmcnt(%d) lgkmcnt(0)" % (nd if it <= 7 else 0))
            a("s_barrier")
            if it + 2 <= 9: aload(it + 2)
            if it + 3 <= 9: dma(it + 3)
            bread(it + 1, 0, B0)
        else:
            a("s_waitcnt lgkmcnt(0)")
        mfmas(it, 1, B1)
    a("s_nop 15")
    return acc

def gen_k1(a):
    a.lab("k1_kernel")
    a("s_cmp_ge_u32 s2, 256")
    a("s_cbranch_scc1 K1_END")
    a("s_load_dwordx4 s[36:39], s[0:1], %d" % KA["bre"])
    a("s_load_dwordx2 s[6:7], s[0:1], %d" % KA["ws"])
    a("v_lshrrev_b32 v1, 6, v0")
    a("v_and_b32 v4, 63, v0")
    a("s_nop 0")
    a("v_readfirstlane_b32 s28, v1")
    a("s_and_b32 s3, s2, 7")
    a("s_lshr_b32 s4, s2, 3")
    a("s_lshl_b32 s29, s3, 1")
    a("s_lshr_b32 s5, s4, 4")
    a("s_add_u32 s29, s29, s5")
    a("s_and_b32 s30, s4, 15")
    a("v_and_b32 v5, 15, v4")
    a("v_lshrrev_b32 v6, 4, v4")
    a("v_mul_u32_u24 v1, 1280, v5")
    a("v_lshl_add_u32 v1, v6, 4, v1")
    a("v_lshlrev_b32 v2, 4, v4")
    a("v_add_u32 v3, %d, v2" % (K1_ST + 2 * STG))
    a("v_add_u32 v2, %d, v2" % K1_ST)
    a("s_lshl_b32 s32, s28, 10")
    a("s_lshl_b32 s33, s29, 7")
    a("s_lshl_b32 s3, s28, 5")
    a("s_add_u32 s33, s33, s3")
    a("s_mul_i32 s33, s33, 1280")
    a("s_add_u32 s34, s33, %d" % (16 * 1280))
    a("s_waitcnt lgkmcnt(0)")
    srd(a, 8, 6, WS_XN, SZ_XN)
    a("s_cmp_ge_u32 s30, 8")
    a("s_cbranch_scc1 K1_FFN")
    a("s_cmp_lt_u32 s28, 2")
    a("s_cselect_b32 s4, s36, s38")
    a("s_cselect_b32 s5, s37, s39")
    srd(a, 12, 4, 0, 640 * 1280)
    srd(a, 16, 6, WS_CONST, SZ_CONST)
    srd(a, 20, 6, WS_AGG, SZ_AGG)
    srd(a, 24, 6, WS_H, SZ_H)
    a("s_mul_i32 s31, s30, %d" % (80 * 1280))
    a("s_and_b32 s3, s28, 1")
    a("s_lshl_b32 s3, s3, 6")
    a("s_add_u32 s31, s31, s3")
    a("v_lshlrev_b32 v7, 4, v4")
    a("s_mul_i32 s3, s30, 5120")
    a("s_add_u32 s35, s3, s32")
    a("s_add_u32 m0, s32, %d" % K1_CB)
    a("s_add_u32 s3, s3, 4096")
    a("buffer_load_dwordx4 v7, s[16:19], s35 offen lds")
    a("s_mov_b32 m0, %d" % (K1_CB + 4096))
    a("s_nop 0")
    a("buffer_load_dwordx4 v7, s[16:19], s3 offen lds")
    acc = k1_main(a, 10, True)
    a("s_barrier")
    CU = lambda u: 108 + 12 * u
    a("v_lshlrev_b32 v7, 6, v5")
    for u in range(5):
        for k in range(3):
            a("ds_read_b128 %s, v7 offset:%d" % (v(CU(u) + 4 * k, 4), K1_CB + u * 1024 + 16 * k))
    a("s_lshl_b32 s3, s28, 3")
    a("v_add_u32 v8, s3, v6")
    a("v_mul_u32_u24 v8, 640, v8")
    a("v_lshl_add_u32 v8, v5, 3, v8")
    a("s_waitcnt lgkmcnt(0)")
    for u in range(5):
        cr, ci, lr, li = CU(u), CU(u) + 1, CU(u) + 2, CU(u) + 3
        for rt in range(2):
            R = acc(rt, 2 * u); I = acc(rt, 2 * u + 1)
            for r in range(4):
                a("v_mul_f32 v9, v%d, v%d" % (ci, I + r))
                a("v_mul_f32 v%d, v%d, v%d" % (I + r, cr, I + r))
                a("v_fma_f32 v%d, v%d, v%d, v%d" % (I + r, ci, R + r, I + r))
                a("v_fma_f32 v%d, v%d, v%d, -v9" % (R + r, cr, R + r))
            for r in range(1, 4):
                a("v_fma_f32 v%d, v%d, v%d, v%d" % (R + r, lr, R + r - 1, R + r))
                a("v_fma_f32 v%d, v%d, v%d, v%d" % (I + r, lr, I + r - 1, I + r))
                a("v_fma_f32 v%d, -v%d, v%d, v%d" % (R + r, li, I + r - 1, R + r))
                a("v_fma_f32 v%d, v%d, v%d, v%d" % (I + r, li, R + r - 1, I + r))
            o = K1_T + rt * 2560 + u * 128
            a("v_add_u32 v9, %d, v8" % o)
            a("ds_write2_b32 v9, v%d, v%d offset0:0 offset1:1" % (R + 3, I + 3))
    a("s_waitcnt lgkmcnt(0)")
    a("s_barrier")
    TV = 168; S0 = 232; S1 = 234; L4 = 236; PUB = 240; VA = 244; VG = 245; BAD = 246; TMP = 247
    a("s_mov_b64 s[40:41], exec")
    a("s_mov_b64 exec, 0xfffff")
    a("s_mul_i32 s3, s28, 20")
    a("v_add_u32 v%d, s3, v4" % TMP)
    a("v_lshlrev_b32 v%d, 3, v%d" % (VA, TMP))
    a("v_lshlrev_b32 v%d, 4, v%d" % (VG, TMP))
    a("v_lshlrev_b32 v%d, 6, v%d" % (TMP, TMP))
    a("ds_read_b128 %s, v%d offset:%d" % (v(L4, 4), TMP, K1_CB + 32))
    def readT():
        for g in range(32):
            a("ds_read_b64 %s, v%d offset:%d" % (v(TV + 2 * g, 2), VA, K1_T + g * 640))
    def horner(src, dst, mr, mi, tr, ti):
        a("v_fma_f32 v%d, v%d, v%d, v%d" % (dst, mr, src, tr))
        a("v_fma_f32 v%d, v%d, v%d, v%d" % (dst + 1, mr, src + 1, ti))
        a("v_fma_f32 v%d, -v%d, v%d, v%d" % (dst, mi, src + 1, dst))
        a("v_fma_f32 v%d, v%d, v%d, v%d" % (dst + 1, mi, src, dst + 1))
    readT()
    a("s_waitcnt lgkmcnt(0)")
    a("v_mov_b32 v%d, v%d" % (S0, TV))
    a("v_mov_b32 v%d, v%d" % (S0 + 1, TV + 1))
    cur = S0
    for g in range(1, 32):
        nxt = S1 if cur == S0 else S0
        horner(cur, nxt, L4, L4 + 1, TV + 2 * g, TV + 2 * g + 1)
        cur = nxt
    a("v_mov_b32 v%d, v%d" % (PUB, cur))
    a("v_mov_b32 v%d, 1" % (PUB + 1))
    a("v_mov_b32 v%d, v%d" % (PUB + 2, cur + 1))
    a("v_mov_b32 v%d, 1" % (PUB + 3))
    a("s_lshl_b32 s42, s30, 4")
    a("s_mul_i32 s42, s42, 1280")
    a("s_mul_i32 s3, s29, 1280")
    a("s_add_u32 s3, s3, s42")
    a("buffer_store_dwordx4 %s, v%d, s[20:23], s3 offen sc0 sc1" % (v(PUB, 4), VG))
    a("s_mov_b32 s43, 0")
    a.lab("K1_POLL")
    for c in range(15):
        a("s_cmp_le_u32 s29, %d" % c)
        a("s_cbranch_scc1 K1_LOADED")
        a("s_add_u32 s35, s42, %d" % (c * 1280))
        a("buffer_load_dwordx4 %s, v%d, s[20:23], s35 offen sc0 sc1" % (v(TV + 4 * c, 4), VG))
    a.lab("K1_LOADED")
    a("s_waitcnt vmcnt(0)")
    a("v_mov_b32 v%d, 0" % BAD)
    for c in range(15):
        a("s_cmp_le_u32 s29, %d" % c)
        a("s_cbranch_scc1 K1_CHK")
        a("v_xor_b32 v%d, 1, v%d" % (TMP, TV + 4 * c + 1))
        a("v_or_b32 v%d, v%d, v%d" % (BAD, BAD, TMP))
        a("v_xor_b32 v%d, 1, v%d" % (TMP, TV + 4 * c + 3))
        a("v_or_b32 v%d, v%d, v%d" % (BAD, BAD, TMP))
    a.lab("K1_CHK")
    a("v_cmp_ne_u32 vcc, 0, v%d" % BAD)
    a("s_add_u32 s43, s43, 1")
    a("s_cmp_ge_u32 s43, 0x40000")
    a("s_cbranch_scc1 K1_GOT")
    a("s_nop 4")
    a("s_cbranch_vccnz K1_POLL")
    a.lab("K1_GOT")
    a("v_mov_b32 v%d, 0" % S0)
    a("v_mov_b32 v%d, 0" % (S0 + 1))
    for c in range(15):
        a("s_cmp_le_u32 s29, %d" % c)
        a("s_cbranch_scc1 K1_CARRY")
        horner(S0, S1, L4 + 2, L4 + 3, TV + 4 * c, TV + 4 * c + 2)
        a("v_mov_b32 v%d, v%d" % (S0, S1))
        a("v_mov_b32 v%d, v%d" % (S0 + 1, S1 + 1))
    a.lab("K1_CARRY")
    readT()
    a("s_waitcnt lgkmcnt(0)")
    cur = S0
    for g in range(32):
        a("ds_write_b64 v%d, %s offset:%d" % (VA, v(cur, 2), K1_P + g * 640))
        if g < 31:
            nxt = S1 if cur == S0 else S0
            horner(cur, nxt, L4, L4 + 1, TV + 2 * g, TV + 2 * g + 1)
            cur = nxt
    a("s_mov_b64 exec, s[40:41]")
    a("s_waitcnt lgkmcnt(0)")
    a("s_barrier")
    PV = 168
    for u in range(5):
        for rt in range(2):
            a("ds_read_b64 %s, v8 offset:%d" % (v(PV + 4 * u + 2 * rt, 2), K1_P + rt * 2560 + u * 128))
    a("s_mul_i32 s3, s28, 10240")
    a("s_add_u32 s4, s3, %d" % K1_T)
    a("s_add_u32 s5, s3, %d" % (K1_O2 - 20480))
    a("s_cmp_lt_u32 s28, 2")
    a("s_cselect_b32 s44, s4, s5")
    a("v_mul_u32_u24 v7, 640, v6")
    a("v_lshl_add_u32 v7, v5, 1, v7")
    a("v_add_u32 v7, s44, v7")
    a("s_waitcnt lgkmcnt(0)")
    for u in range(5):
        for rt in range(2):
            R = acc(rt, 2 * u); I = acc(rt, 2 * u + 1)
            Pr = PV + 4 * u + 2 * rt; Pi = Pr + 1
            for r in range(4):
                mr = CU(u) + 2 + 2 * r; mi = mr + 1
                a("v_fma_f32 v%d, v%d, v%d, v%d" % (R + r, mr, Pr, R + r))
                a("v_fma_f32 v%d, v%d, v%d, v%d" % (I + r, mr, Pi, I + r))
                a("v_fma_f32 v%d, -v%d, v%d, v%d" % (R + r, mi, Pi, R + r))
                a("v_fma_f32 v%d, v%d, v%d, v%d" % (I + r, mi, Pr, I + r))
                a("v_cvt_pk_bf16_f32 v%d, v%d, v%d" % (R + r, R + r, I + r))
                o = (16 * rt + r) * 160 + u * 32
                a("ds_write_b16 v7, v%d offset:%d" % (R + r, o))
                a("ds_write_b16_d16_hi v7, v%d offset:%d" % (R + r, o + 5120))
    a("v_lshlrev_b32 v7, 4, v4")
    a("v_add_u32 v7, s44, v7")
    a("s_lshl_b32 s3, s29, 7")
    a("s_lshl_b32 s4, s28, 5")
    a("s_add_u32 s3, s3, s4")
    a("s_mul_i32 s3, s3, 2560")
    a("s_mul_i32 s4, s30, 160")
    a("s_add_u32 s3, s3, s4")
    a("s_waitcnt lgkmcnt(0)")
    for j in range(10):
        a("ds_read_b128 %s, v7 offset:%d" % (v(168 + 4 * j, 4), 1024 * j))
    for j in range(10):
        d = 210 + j
        a("v_add_u32 v9, %d, v4" % (64 * j))
        a("v_mul_u32_u24 v10, 0xcccd, v9")
        a("v_lshrrev_b32 v10, 19, v10")
        a("v_mul_u32_u24 v11, 10, v10")
        a("v_sub_u32 v11, v9, v11")
        a("v_and_b32 v9, 31, v10")
        a("v_mul_u32_u24 v9, 2560, v9")
        a("v_lshrrev_b32 v10, 5, v10")
        a("v_mul_u32_u24 v10, 1280, v10")
        a("v_add_u32 v9, v9, v10")
        a("v_lshl_add_u32 v%d, v11, 4, v9" % d)
    for j in range(10):
        a("s_waitcnt lgkmcnt(%d)" % (9 - j))
        a("buffer_store_dwordx4 %s, v%d, s[24:27], s3 offen" % (v(168 + 4 * j, 4), 210 + j))
    a("s_endpgm")
    a.lab("K1_FFN")
    srd(a, 12, 6, WS_W1T, SZ_W)
    srd(a, 24, 6, WS_H1, SZ_H1)
    a("s_sub_u32 s30, s30, 8")
    a("s_mul_i32 s31, s30, 192")
    a("s_lshr_b32 s3, s28, 1")
    a("s_lshl_b32 s3, s3, 4")
    a("s_add_u32 s31, s31, s3")
    a("s_mul_i32 s31, s31, 1280")
    a("s_and_b32 s3, s28, 1")
    a("s_lshl_b32 s3, s3, 6")
    a("s_add_u32 s31, s31, s3")
    acc = k1_main(a, 12, False)
    a("v_mul_u32_u24 v7, 3072, v5")
    a("v_lshl_add_u32 v7, v6, 3, v7")
    a("s_lshl_b32 s3, s29, 7")
    a("s_lshl_b32 s4, s28, 5")
    a("s_add_u32 s3, s3, s4")
    a("s_mul_i32 s3, s3, 3072")
    a("s_mul_i32 s4, s30, 384")
    a("s_add_u32 s3, s3, s4")
    a("s_add_u32 s4, s3, %d" % (16 * 3072))
    a("s_mov_b32 s5, %s" % fhex(-1.4426950408889634))
    T = 108
    for rt in range(2):
        for ct in range(12):
            C = acc(rt, ct)
            t = T + ((rt * 12 + ct) % 4) * 12
            a("v_cvt_pk_bf16_f32 v%d, v%d, v%d" % (t, C, C + 1))
            a("v_cvt_pk_bf16_f32 v%d, v%d, v%d" % (t + 1, C + 2, C + 3))
            a("v_lshlrev_b32 v%d, 16, v%d" % (C, t))
            a("v_and_b32 v%d, 0xffff0000, v%d" % (C + 1, t))
            a("v_lshlrev_b32 v%d, 16, v%d" % (C + 2, t + 1))
            a("v_and_b32 v%d, 0xffff0000, v%d" % (C + 3, t + 1))
            for r in range(4): a("v_mul_f32 v%d, s5, v%d" % (t + 2 + r, C + r))
            for r in range(4): a("v_exp_f32 v%d, v%d" % (t + 2 + r, t + 2 + r))
            for r in range(4): a("v_add_f32 v%d, 1.0, v%d" % (t + 2 + r, t + 2 + r))
            for r in range(4): a("v_rcp_f32 v%d, v%d" % (t + 2 + r, t + 2 + r))
            for r in range(4): a("v_mul_f32 v%d, v%d, v%d" % (t + 2 + r, C + r, t + 2 + r))
            a("v_cvt_pk_bf16_f32 v%d, v%d, v%d" % (t + 6, t + 2, t + 3))
            a("v_cvt_pk_bf16_f32 v%d, v%d, v%d" % (t + 7, t + 4, t + 5))
            a("buffer_store_dwordx2 %s, v7, s[24:27], s%d offen offset:%d" % (v(t + 6, 2), 3 + rt, ct * 32))
    a.lab("K1_END")
    a("s_endpgm")

K3_PITCH = 84 * 4
K3_PART = 64 * K3_PITCH
K3_LDS = 4 * K3_PART
K3_D = 3
def k3_main(a, nsteps, tag):
    RING = 92
    def acc(i, j): return 12 + (i * 5 + j) * 4
    def loads(s):
        base = RING + (s % K3_D) * 36
        for i in range(4):
            a("buffer_load_dwordx4 %s, v1, s[8:11], s%d offen offset:%d" % (v(base + 4 * i, 4), 36 + i, s * 64))
        for j in range(5):
            a("buffer_load_dwordx4 %s, v2, s[12:15], s%d offen offset:%d" % (v(base + 16 + 4 * j, 4), 40 + j, s * 64))
    for s in range(K3_D): loads(s)
    for s in range(nsteps):
        inflight = min(K3_D - 1, nsteps - 1 - s)
        a("s_waitcnt vmcnt(%d)" % (9 * inflight))
        base = RING + (s % K3_D) * 36
        for i in range(4):
            for j in range(5):
                C = v(acc(i, j), 4)
                a("v_mfma_f32_16x16x32_bf16 %s, %s, %s, %s" % (C, v(base + 4 * i, 4), v(base + 16 + 4 * j, 4), "0" if s == 0 else C))
        if s + K3_D < nsteps: loads(s + K3_D)
    a("s_branch K3_EPI")

def gen_k3(a):
    a.lab("k3_kernel")
    a("s_cmp_ge_u32 s2, 256")
    a("s_cbranch_scc1 K3_END")
    a("s_load_dwordx4 s[48:51], s[0:1], %d" % KA["cre"])
    a("s_load_dwordx2 s[6:7], s[0:1], %d" % KA["ws"])
    a("s_load_dwordx2 s[52:53], s[0:1], %d" % KA["x"])
    a("s_load_dwordx2 s[54:55], s[0:1], %d" % KA["dsk"])
    a("s_load_dwordx2 s[56:57], s[0:1], %d" % KA["out"])
    a("v_lshrrev_b32 v1, 6, v0")
    a("v_and_b32 v4, 63, v0")
    a("s_nop 0")
    a("v_readfirstlane_b32 s28, v1")
    a("s_and_b32 s3, s2, 7")
    a("s_lshr_b32 s4, s2, 3")
    a("s_lshl_b32 s29, s3, 2")
    a("s_lshr_b32 s5, s4, 3")
    a("s_add_u32 s29, s29, s5")
    a("s_and_b32 s30, s4, 7")
    a("v_and_b32 v5, 15, v4")
    a("v_lshrrev_b32 v6, 4, v4")
    a("s_waitcnt lgkmcnt(0)")
    a("s_cmp_ge_u32 s28, 2")
    a("s_cbranch_scc1 K3_FFNW")
    srd(a, 8, 6, WS_H, SZ_H)
    a("s_cmp_eq_u32 s28, 0")
    a("s_cselect_b32 s4, s48, s50")
    a("s_cselect_b32 s5, s49, s51")
    srd(a, 12, 4, 0, 640 * 1280)
    a("v_mul_u32_u24 v1, 2560, v5")
    a("v_lshl_add_u32 v1, v6, 4, v1")
    a("v_mul_u32_u24 v2, 1280, v5")
    a("v_lshl_add_u32 v2, v6, 4, v2")
    a("s_mul_i32 s36, s29, %d" % (64 * 2560))
    a("s_mul_i32 s3, s28, 1280")
    a("s_add_u32 s36, s36, s3")
    for i in range(1, 4): a("s_add_u32 s%d, s36, %d" % (36 + i, i * 16 * 2560))
    a("s_mul_i32 s40, s30, %d" % (80 * 1280))
    for j in range(1, 5): a("s_add_u32 s%d, s40, %d" % (40 + j, j * 16 * 1280))
    k3_main(a, 20, "S")
    a.lab("K3_FFNW")
    srd(a, 8, 6, WS_H1, SZ_H1)
    srd(a, 12, 6, WS_W2T, SZ_W)
    a("v_mul_u32_u24 v1, 3072, v5")
    a("v_lshl_add_u32 v1, v6, 4, v1")
    a("v_mov_b32 v2, v1")
    a("s_mul_i32 s36, s29, %d" % (64 * 3072))
    a("s_sub_u32 s3, s28, 2")
    a("s_mul_i32 s3, s3, 1536")
    a("s_add_u32 s36, s36, s3")
    for i in range(1, 4): a("s_add_u32 s%d, s36, %d" % (36 + i, i * 16 * 3072))
    a("s_mul_i32 s40, s30, %d" % (80 * 3072))
    a("s_add_u32 s40, s40, s3")
    for j in range(1, 5): a("s_add_u32 s%d, s40, %d" % (40 + j, j * 16 * 3072))
    k3_main(a, 24, "F")
    a.lab("K3_EPI")
    srd(a, 16, 52, 0, SZ_XN)
    srd(a, 20, 6, WS_XN, SZ_XN)
    srd(a, 24, 54, 0, 1280)
    srd(a, 32, 56, 0, 2048 * 640 * 4)
    a("s_mul_i32 s3, s29, %d" % (64 * 1280))
    a("s_mul_i32 s4, s30, 160")
    a("s_add_u32 s3, s3, s4")
    a("s_lshl_b32 s5, s3, 1")
    E = 92
    for j in range(5):
        b = E + 8 * j
        a("v_add_u32 v7, %d, v0" % (256 * j))
        a("v_mul_u32_u24 v8, 0xcccd, v7")
        a("v_lshrrev_b32 v8, 20, v8")
        a("v_mul_u32_u24 v9, 20, v8")
        a("v_sub_u32 v9, v7, v9")
        a("v_mul_u32_u24 v%d, 1280, v8" % b)
        a("v_lshl_add_u32 v%d, v9, 3, v%d" % (b, b))
        a("v_mul_u32_u24 v%d, %d, v8" % (b + 1, K3_PITCH))
        a("v_lshl_add_u32 v%d, v9, 4, v%d" % (b + 1, b + 1))
        a("v_lshlrev_b32 v9, 3, v9")
        a("buffer_load_dwordx2 %s, v%d, s[16:19], s3 offen" % (v(b + 2, 2), b))
        a("buffer_load_dwordx2 %s, v%d, s[20:23], s3 offen" % (v(b + 4, 2), b))
        a("buffer_load_dwordx2 %s, v9, s[24:27], s4 offen" % (v(b + 6, 2)))
    a("v_mul_u32_u24 v7, %d, v6" % (4 * K3_PITCH))
    a("v_lshl_add_u32 v7, v5, 2, v7")
    a("s_mul_i32 s10, s28, %d" % K3_PART)
    a("v_add_u32 v7, s10, v7")
    a("s_nop 7")
    for i in range(4):
        for j in range(5):
            for r in range(4):
                a("ds_write_b32 v7, v%d offset:%d" % (12 + (i * 5 + j) * 4 + r, (16 * i + r) * K3_PITCH + j * 64))
    a("s_waitcnt lgkmcnt(0)")
    a("s_barrier")
    a("s_mov_b32 s11, %s" % fhex(-1.4426950408889634))
    P = 140
    for j in range(5):
        b = E + 8 * j
        for w in range(4):
            a("ds_read_b128 %s, v%d offset:%d" % (v(P + 16 * j + 4 * w, 4), b + 1, w * K3_PART))
    a("s_waitcnt vmcnt(0)")
    for j in range(5):
        b = E + 8 * j; p = P + 16 * j
        a("s_waitcnt lgkmcnt(%d)" % min(15, 4 * (4 - j)))
        for e in range(4):
            src = b + 2 + e // 2
            def unpack(d, s):
                if e % 2 == 0: a("v_lshlrev_b32 v%d, 16, v%d" % (d, s))
                else: a("v_and_b32 v%d, 0xffff0000, v%d" % (d, s))
            unpack(12, b + 2 + e // 2)
            unpack(13, b + 4 + e // 2)
            unpack(14, b + 6 + e // 2)
            a("v_mul_f32 v13, v13, v14")
            bf16r(a, 13, 13)
            a("v_sub_f32 v15, v%d, v%d" % (p + e, p + 4 + e))
            a("v_fma_f32 v15, 2.0, v15, v13")
            a("v_add_f32 v16, v%d, v%d" % (p + 8 + e, p + 12 + e))
            bf16r(a, 16, 16)
            a("v_mul_f32 v17, s11, v16")
            a("v_exp_f32 v17, v17")
            a("s_nop 0")
            a("v_add_f32 v17, 1.0, v17")
            a("v_rcp_f32 v17, v17")
            a("s_nop 0")
            a("v_mul_f32 v17, v16, v17")
            bf16r(a, 17, 17)
            a("v_mul_f32 v15, v15, v17")
            a("v_add_f32 v%d, v12, v15" % (p + e))
        a("v_lshlrev_b32 v18, 1, v%d" % b)
        a("buffer_store_dwordx4 %s, v18, s[32:35], s5 offen" % v(p, 4))
        a("s_nop 1")
    a.lab("K3_END")
    a("s_endpgm")
```

```python
import sys
from gen import *
from gen_k13 import *
def main():
    out = sys.argv[1]
    only = sys.argv[2] if len(sys.argv) > 2 else "k0,k1,k3"
    only = only.split(",")
    hdr = open("cdna_kernels/%s.s.ref" % NAME).read().split("; Override launch")[0]
    launches = []
    if "k0" in only: launches.append("; @launch kernel=k0_kernel grid=(%d,1,1) block=(256,1,1) lds=%d" % (K0_Z, K0_LDS))
    if "k1" in only: launches.append("; @launch kernel=k1_kernel grid=(256,1,1) block=(256,1,1) lds=%d" % K1_LDS)
    if "k3" in only: launches.append("; @launch kernel=k3_kernel grid=(256,1,1) block=(256,1,1) lds=%d" % K3_LDS)
    t = hdr + "\n".join(launches) + "\n"
    t += '.amdgcn_target "amdgcn-amd-amdhsa--gfx950"\n.text\n'
    kern = []
    if "k0" in only: kern.append(("k0_kernel", gen_k0, 128))
    if "k1" in only: kern.append(("k1_kernel", gen_k1, 256))
    if "k3" in only: kern.append(("k3_kernel", gen_k3, 256))
    for n, g, vg in kern:
        a = A(); g(a)
        t += ".globl %s\n.p2align 8\n.type %s,@function\n" % (n, n) + a.text()
    t += '.section .rodata,"a"\n'
    for n, g, vg in kern:
        t += ".p2align 6\n" + desc(n, vg)
    open(out, "w").write(t)

main()
```

```python
import sys, struct
NAME = "recurrent_scan__ssm_conv_s5__dense_activation_silu__prompt"

WS_XN    = 0x000000
WS_W1T   = 0x280000
WS_W2T   = 0x460000
WS_CONST = 0x640000
WS_AGG   = 0x650000
WS_H     = 0x680000
WS_H1    = 0xB80000
WS_BRE   = 0x1180000
WS_BIM   = 0x1248000
WS_CRE   = 0x1310000
WS_CIM   = 0x13D8000
SZ_SQ = 640*640*2
SZ_XN = 2048*640*2; SZ_W = 640*1536*2; SZ_CONST = 640*64; SZ_AGG = 8*16*80*16
SZ_H = 2048*1280*2; SZ_H1 = 2048*1536*2

KA = dict(x=0, lre=8, lim=16, bre=24, bim=32, cre=40, cim=48, ldt=56, dsk=64, bx=72, w1=80, w2=88, out=96, dbg=104, ws=112)

def f2u(f):
    return struct.unpack("<I", struct.pack("<f", f))[0]
def fhex(f):
    return "0x%08x" % f2u(f)

class A:
    def __init__(s):
        s.L = []
    def __call__(s, t):
        for l in t.strip("\n").split("\n"):
            l = l.strip()
            if l: s.L.append("    " + l)
    def lab(s, l): s.L.append(l + ":")
    def c(s, t): s.L.append("    ; " + t)
    def text(s): return "\n".join(s.L) + "\n"

def v(i, n=1):
    return "v%d" % i if n == 1 else "v[%d:%d]" % (i, i + n - 1)
def sr(i, n=1):
    return "s%d" % i if n == 1 else "s[%d:%d]" % (i, i + n - 1)

def srd(a, d, base, off, size):
    if off:
        a("s_add_u32 s%d, s%d, 0x%x" % (d, base, off))
        a("s_addc_u32 s%d, s%d, 0" % (d + 1, base + 1))
    else:
        a("s_mov_b32 s%d, s%d" % (d, base))
        a("s_mov_b32 s%d, s%d" % (d + 1, base + 1))
    a("s_and_b32 s%d, s%d, 0xffff" % (d + 1, d + 1))
    a("s_mov_b32 s%d, 0x%x" % (d + 2, size))
    a("s_mov_b32 s%d, 0x00020000" % (d + 3))

def wave_sum(a, x, t):
    for p in ["quad_perm:[1,0,3,2]", "quad_perm:[2,3,0,1]", "row_half_mirror", "row_mirror"]:
        a("s_nop 1")
        a("v_add_f32_dpp v%d, v%d, v%d %s row_mask:0xf bank_mask:0xf" % (t, x, x, p))
        a("v_mov_b32 v%d, v%d" % (x, t))
    a("s_nop 1")
    for i in range(4):
        a("v_readlane_b32 s%d, v%d, %d" % (20 + i, x, 16 * i))
    a("s_nop 1")
    a("v_mov_b32 v%d, s20" % x)
    a("v_add_f32 v%d, s21, v%d" % (x, x))
    a("v_mov_b32 v%d, s22" % t)
    a("v_add_f32 v%d, s23, v%d" % (t, t))
    a("v_add_f32 v%d, v%d, v%d" % (x, x, t))

def div_refine(a, q, n, d, r, t):
    a("v_mul_f32 v%d, v%d, v%d" % (q, n, r))
    a("v_fma_f32 v%d, -v%d, v%d, v%d" % (t, q, d, n))
    a("v_fma_f32 v%d, v%d, v%d, v%d" % (q, t, r, q))

def bf16r(a, d, x):
    a("v_cvt_pk_bf16_f32 v%d, v%d, v%d" % (d, x, x))
    a("v_lshlrev_b32 v%d, 16, v%d" % (d, d))

def exp_acc(a, d, x, t0, t1):
    a("v_mul_f32 v%d, s30, v%d" % (t0, x))
    a("v_fma_f32 v%d, v%d, s30, -v%d" % (t1, x, t0))
    a("v_fma_f32 v%d, v%d, s31, v%d" % (t1, x, t1))
    a("v_exp_f32 v%d, v%d" % (d, t0))
    a("v_mul_f32 v%d, s32, v%d" % (t1, t1))
    a("v_fma_f32 v%d, v%d, v%d, v%d" % (d, d, t1, d))

def cmul(a, dr, di, ar, ai, br, bi):
    a("v_mul_f32 v%d, v%d, v%d" % (dr, ar, br))
    a("v_fma_f32 v%d, -v%d, v%d, v%d" % (dr, ai, bi, dr))
    a("v_mul_f32 v%d, v%d, v%d" % (di, ar, bi))
    a("v_fma_f32 v%d, v%d, v%d, v%d" % (di, ai, br, di))

K0_LN = 128; K0_CP = K0_LN + 160; K0_T1 = K0_CP + 240; K0_T2 = K0_T1 + 240; K0_C = K0_T2 + 3; K0_Z = K0_C + 40
K0_LDS = 20480
def wave_sum4(a, xs, ts):
    for p in ["quad_perm:[1,0,3,2]", "quad_perm:[2,3,0,1]", "row_half_mirror", "row_mirror"]:
        for x, t in zip(xs, ts):
            a("v_add_f32_dpp v%d, v%d, v%d %s row_mask:0xf bank_mask:0xf" % (t, x, x, p))
        for x, t in zip(xs, ts):
            a("v_mov_b32 v%d, v%d" % (x, t))
        a("s_nop 1")
    for n, x in enumerate(xs):
        for i in range(4):
            a("v_readlane_b32 s%d, v%d, %d" % (40 + 4 * n + i, x, 16 * i))
    a("s_nop 1")
    for n, (x, t) in enumerate(zip(xs, ts)):
        a("v_mov_b32 v%d, s%d" % (x, 40 + 4 * n))
        a("v_add_f32 v%d, s%d, v%d" % (x, 41 + 4 * n, x))
        a("v_mov_b32 v%d, s%d" % (t, 42 + 4 * n))
        a("v_add_f32 v%d, s%d, v%d" % (t, 43 + 4 * n, t))
        a("v_add_f32 v%d, v%d, v%d" % (x, x, t))

def gen_k0(a):
    a.lab("k0_kernel")
    a("s_cmp_ge_u32 s2, %d" % K0_Z)
    a("s_cbranch_scc1 K0_END")
    a("s_load_dwordx2 s[6:7], s[0:1], %d" % KA["ws"])
    a("s_cmp_ge_u32 s2, %d" % K0_LN)
    a("s_cbranch_scc1 K0_NOTLN")
    a("s_load_dwordx2 s[4:5], s[0:1], %d" % KA["x"])
    a("v_lshrrev_b32 v1, 6, v0")
    a("v_and_b32 v2, 63, v0")
    a("v_lshlrev_b32 v1, 2, v1")
    a("v_lshlrev_b32 v3, 8, v2")
    a("v_lshl_add_u32 v3, v1, 4, v3")
    a("v_lshrrev_b32 v4, 2, v2")
    a("v_lshlrev_b32 v4, 8, v4")
    a("v_and_b32 v5, 3, v2")
    a("v_lshl_add_u32 v4, v5, 2, v4")
    a("v_lshl_add_u32 v4, v1, 4, v4")
    a("v_add_u32 v4, %d, v4" % (64 * 256))
    a("s_lshl_b32 s3, s2, 4")
    a("v_add_u32 v1, s3, v1")
    a("v_mul_u32_u24 v1, 1280, v1")
    a("v_lshlrev_b32 v5, 2, v2")
    a("v_add_u32 v5, v5, v1")
    a("v_lshlrev_b32 v2, 4, v2")
    a("v_add_u32 v2, v2, v1")
    a("s_waitcnt lgkmcnt(0)")
    srd(a, 8, 4, 0, SZ_XN)
    srd(a, 12, 6, WS_XN, SZ_XN)
    RB = lambda n: 16 + 24 * n
    for n in range(4):
        a("s_mov_b32 s3, %d" % (1280 * n))
        a("buffer_load_dwordx4 %s, v2, s[8:11], s3 offen" % (v(RB(n), 4)))
        a("buffer_load_dword v%d, v5, s[8:11], s3 offen offset:1024" % (RB(n) + 4))
    a("v_mov_b32 v8, %s" % fhex(640.0))
    a("v_mov_b32 v9, %s" % fhex(1.0 / 640.0))
    a("s_waitcnt vmcnt(0)")
    for n in range(4):
        b = RB(n)
        for i in range(5):
            a("v_lshlrev_b32 v%d, 16, v%d" % (b + 6 + 2 * i, b + i))
            a("v_and_b32 v%d, 0xffff0000, v%d" % (b + 7 + 2 * i, b + i))
        a("v_add_f32 v%d, v%d, v%d" % (b + 16, b + 6, b + 7))
        a("v_add_f32 v%d, v%d, v%d" % (b + 17, b + 8, b + 9))
        a("v_add_f32 v%d, v%d, v%d" % (b + 18, b + 10, b + 11))
        a("v_add_f32 v%d, v%d, v%d" % (b + 19, b + 12, b + 13))
        a("v_add_f32 v%d, v%d, v%d" % (b + 20, b + 14, b + 15))
        a("v_add_f32 v%d, v%d, v%d" % (b + 16, b + 16, b + 17))
        a("v_add_f32 v%d, v%d, v%d" % (b + 18, b + 18, b + 19))
        a("v_add_f32 v%d, v%d, v%d" % (b + 16, b + 16, b + 18))
        a("v_add_f32 v%d, v%d, v%d" % (b + 16, b + 16, b + 20))
    a("s_nop 1")
    wave_sum4(a, [RB(n) + 16 for n in range(4)], [RB(n) + 17 for n in range(4)])
    for n in range(4):
        b = RB(n)
        div_refine(a, b + 18, b + 16, 8, 9, b + 17)
        a("v_mov_b32 v%d, 0" % (b + 16))
        for i in range(10):
            a("v_sub_f32 v%d, v%d, v%d" % (b + 17, b + 6 + i, b + 18))
            a("v_fma_f32 v%d, v%d, v%d, v%d" % (b + 16, b + 17, b + 17, b + 16))
    a("s_nop 1")
    wave_sum4(a, [RB(n) + 16 for n in range(4)], [RB(n) + 17 for n in range(4)])
    for n in range(4):
        b = RB(n)
        div_refine(a, b + 19, b + 16, 8, 9, b + 17)
        bf16r(a, b + 18, b + 18)
        bf16r(a, b + 19, b + 19)
        a("v_add_f32 v%d, %s, v%d" % (b + 19, fhex(1e-5), b + 19))
        bf16r(a, b + 19, b + 19)
        a("v_sqrt_f32 v%d, v%d" % (b + 20, b + 19))
        a("s_nop 0")
        a("v_rcp_f32 v%d, v%d" % (b + 21, b + 20))
        a("v_fma_f32 v%d, -v%d, v%d, v%d" % (b + 17, b + 20, b + 20, b + 19))
        a("v_mul_f32 v%d, 0.5, v%d" % (b + 21, b + 21))
        a("v_fma_f32 v%d, v%d, v%d, v%d" % (b + 20, b + 17, b + 21, b + 20))
        bf16r(a, b + 20, b + 20)
        a("v_rcp_f32 v%d, v%d" % (b + 21, b + 20))
        a("s_nop 0")
        for i in range(5):
            a("v_sub_f32 v%d, v%d, v%d" % (b + 16, b + 6 + 2 * i, b + 18))
            a("v_sub_f32 v%d, v%d, v%d" % (b + 17, b + 7 + 2 * i, b + 18))
            a("v_cvt_pk_bf16_f32 v%d, v%d, v%d" % (b + 16, b + 16, b + 17))
            a("v_and_b32 v%d, 0xffff0000, v%d" % (b + 17, b + 16))
            a("v_lshlrev_b32 v%d, 16, v%d" % (b + 16, b + 16))
            div_refine(a, b + 22, b + 16, b + 20, b + 21, b + 5)
            div_refine(a, b + 23, b + 17, b + 20, b + 21, b + 5)
            a("v_cvt_pk_bf16_f32 v%d, v%d, v%d" % (b + i, b + 22, b + 23))
        a("ds_write_b128 v3, %s offset:%d" % (v(b, 4), 16 * n))
        a("ds_write_b32 v4, v%d offset:%d" % (b + 4, 16 * n))
    a("v_lshlrev_b32 v1, 4, v0")
    a("s_mul_i32 s3, s2, 20480")
    a("s_waitcnt lgkmcnt(0)")
    a("s_barrier")
    for j in range(5):
        a("ds_read_b128 %s, v1 offset:%d" % (v(16 + 4 * j, 4), 4096 * j))
    for j in range(5):
        a("s_waitcnt lgkmcnt(%d)" % (4 - j))
        a("s_add_u32 s4, s3, %d" % (4096 * j))
        a("buffer_store_dwordx4 %s, v1, s[12:15], s4 offen" % v(16 + 4 * j, 4))
    a("s_endpgm")
    a.lab("K0_NOTLN")
    a("s_cmp_ge_u32 s2, %d" % K0_CP)
    a("s_cbranch_scc1 K0_NOTCP")
    a("s_load_dwordx8 s[16:23], s[0:1], %d" % KA["bre"])
    a("s_sub_u32 s3, s2, %d" % K0_LN)
    a("s_mul_hi_u32 s24, s3, 0x%x" % ((2**32 + 39) // 40))
    a("s_mul_i32 s25, s24, 40")
    a("s_sub_u32 s25, s3, s25")
    a("v_and_b32 v1, 15, v0")
    a("v_lshrrev_b32 v2, 4, v0")
    a("v_mul_u32_u24 v1, 1280, v1")
    a("v_lshl_add_u32 v1, v2, 4, v1")
    a("v_lshlrev_b32 v2, 4, v0")
    a("s_waitcnt lgkmcnt(0)")
    a("s_cmp_eq_u32 s24, 1")
    a("s_cselect_b32 s16, s18, s16")
    a("s_cselect_b32 s17, s19, s17")
    a("s_cmp_eq_u32 s24, 2")
    a("s_cselect_b32 s16, s20, s16")
    a("s_cselect_b32 s17, s21, s17")
    a("s_cmp_eq_u32 s24, 3")
    a("s_cselect_b32 s16, s22, s16")
    a("s_cselect_b32 s17, s23, s17")
    srd(a, 8, 16, 0, SZ_SQ)
    srd(a, 12, 6, WS_BRE, 4 * SZ_SQ)
    a("s_mul_i32 s3, s25, 20480")
    a("s_mul_i32 s4, s24, %d" % SZ_SQ)
    a("s_add_u32 s4, s4, s3")
    for j in range(5):
        a("buffer_load_dwordx4 %s, v1, s[8:11], s3 offen offset:%d" % (v(4 + 4 * j, 4), 256 * j))
    a("s_waitcnt vmcnt(0)")
    for j in range(5):
        a("s_add_u32 s5, s4, %d" % (4096 * j))
        a("buffer_store_dwordx4 %s, v2, s[12:15], s5 offen" % v(4 + 4 * j, 4))
    a("s_endpgm")
    a.lab("K0_NOTCP")
    a("s_cmp_ge_u32 s2, %d" % K0_T2)
    a("s_cbranch_scc1 K0_NOTTR")
    a("s_cmp_ge_u32 s2, %d" % K0_T1)
    a("s_cbranch_scc1 K0_TR2")
    a("s_load_dwordx2 s[4:5], s[0:1], %d" % KA["w1"])
    a("s_sub_u32 s3, s2, %d" % K0_CP)
    a("s_mul_hi_u32 s18, s3, 0x%x" % ((2**32 + 23) // 24))
    a("s_mul_i32 s19, s18, 24")
    a("s_sub_u32 s19, s3, s19")
    a("s_mov_b32 s16, 3072")
    a("s_mov_b32 s17, 20480")
    a("s_waitcnt lgkmcnt(0)")
    srd(a, 12, 6, WS_W1T, SZ_W)
    a("s_branch K0_TRGO")
    a.lab("K0_TR2")
    a("s_load_dwordx2 s[4:5], s[0:1], %d" % KA["w2"])
    a("s_sub_u32 s3, s2, %d" % K0_T1)
    a("s_mul_hi_u32 s18, s3, 0x%x" % ((2**32 + 9) // 10))
    a("s_mul_i32 s19, s18, 10")
    a("s_sub_u32 s19, s3, s19")
    a("s_mov_b32 s16, 1280")
    a("s_mov_b32 s17, 49152")
    a("s_waitcnt lgkmcnt(0)")
    srd(a, 12, 6, WS_W2T, SZ_W)
    a.lab("K0_TRGO")
    srd(a, 8, 4, 0, SZ_W)
    a("s_lshl_b32 s20, s18, 11")
    a("s_lshl_b32 s21, s19, 2")
    a("s_mul_i32 s21, s21, s17")
    a("s_add_u32 s20, s20, s21")
    a("s_lshl_b32 s18, s18, 6")
    a("s_lshl_b32 s19, s19, 6")
    a("v_lshrrev_b32 v1, 3, v0")
    a("v_and_b32 v2, 7, v0")
    a("v_add_u32 v3, s18, v1")
    a("v_mul_lo_u32 v3, v3, s16")
    a("v_lshlrev_b32 v4, 4, v2")
    a("v_add_u32 v3, v3, v4")
    a("s_lshl_b32 s3, s19, 1")
    a("v_add_u32 v3, s3, v3")
    a("s_lshl_b32 s3, s16, 5")
    a("buffer_load_dwordx4 v[8:11], v3, s[8:11], 0 offen")
    a("buffer_load_dwordx4 v[12:15], v3, s[8:11], s3 offen")
    a("v_lshlrev_b32 v5, 7, v1")
    a("v_add_u32 v5, v5, v4")
    a("s_waitcnt vmcnt(0)")
    a("ds_write_b128 v5, v[8:11]")
    a("ds_write_b128 v5, v[12:15] offset:4096")
    a("v_and_b32 v1, 15, v0")
    a("v_lshrrev_b32 v2, 4, v0")
    a("v_and_b32 v2, 7, v2")
    a("v_lshrrev_b32 v6, 7, v0")
    a("v_lshlrev_b32 v5, 10, v2")
    a("v_lshl_add_u32 v5, v1, 1, v5")
    a("v_lshl_add_u32 v5, v6, 5, v5")
    a("v_mul_lo_u32 v3, v6, s17")
    a("v_lshl_add_u32 v3, v2, 8, v3")
    a("v_lshl_add_u32 v3, v1, 4, v3")
    a("s_lshl_b32 s21, s17, 1")
    a("s_add_u32 s21, s21, s20")
    a("s_waitcnt lgkmcnt(0)")
    a("s_barrier")
    for h in range(2):
        for j in range(8):
            a("ds_read_u16 v%d, v5 offset:%d" % (8 + 8 * h + j, 128 * j + 64 * h))
    a("s_waitcnt lgkmcnt(0)")
    for j in range(8):
        a("v_lshl_or_b32 v%d, v%d, 16, v%d" % (24 + j, 9 + 2 * j, 8 + 2 * j))
    a("buffer_store_dwordx4 v[24:27], v3, s[12:15], s20 offen")
    a("buffer_store_dwordx4 v[28:31], v3, s[12:15], s21 offen")
    a("s_endpgm")
    a.lab("K0_NOTTR")
    a("s_cmp_ge_u32 s2, %d" % K0_C)
    a("s_cbranch_scc1 K0_ZERO")
    a("s_load_dwordx4 s[16:19], s[0:1], %d" % KA["lre"])
    a("s_load_dwordx2 s[4:5], s[0:1], %d" % KA["ldt"])
    a("s_sub_u32 s3, s2, %d" % K0_T2)
    a("s_lshl_b32 s3, s3, 8")
    a("v_add_u32 v1, s3, v0")
    a("v_lshlrev_b32 v2, 1, v1")
    a("s_waitcnt lgkmcnt(0)")
    srd(a, 8, 16, 0, 1280)
    srd(a, 12, 18, 0, 1280)
    srd(a, 24, 4, 0, 1280)
    srd(a, 36, 6, WS_CONST, SZ_CONST)
    a("buffer_load_ushort v3, v2, s[8:11], 0 offen")
    a("buffer_load_ushort v4, v2, s[12:15], 0 offen")
    a("buffer_load_ushort v5, v2, s[24:27], 0 offen")
    L2E = 1.4426950408889634
    hi = struct.unpack("<f", struct.pack("<f", L2E))[0]
    a("s_mov_b32 s30, %s" % fhex(hi))
    a("s_mov_b32 s31, %s" % fhex(L2E - hi))
    a("s_mov_b32 s32, %s" % fhex(0.6931471805599453))
    I2P = 0.15915494309189535
    hi2 = struct.unpack("<f", struct.pack("<f", I2P))[0]
    a("s_mov_b32 s33, %s" % fhex(hi2))
    a("s_mov_b32 s34, %s" % fhex(I2P - hi2))
    a("s_waitcnt vmcnt(0)")
    a("v_lshlrev_b32 v3, 16, v3")
    a("v_lshlrev_b32 v4, 16, v4")
    a("v_lshlrev_b32 v5, 16, v5")
    exp_acc(a, 6, 5, 7, 8)
    bf16r(a, 6, 6)
    a("v_mul_f32 v7, v6, v3")
    a("v_mul_f32 v8, v6, v4")
    exp_acc(a, 9, 7, 10, 11)
    a("v_mul_f32 v10, s33, v8")
    a("v_fma_f32 v11, v8, s33, -v10")
    a("v_fma_f32 v11, v8, s34, v11")
    a("v_fract_f32 v10, v10")
    a("v_add_f32 v10, v10, v11")
    a("v_cos_f32 v12, v10")
    a("v_sin_f32 v13, v10")
    a("s_nop 0")
    a("v_mul_f32 v18, v9, v12")
    a("v_mul_f32 v19, v9, v13")
    a("v_add_f32 v10, -1.0, v18")
    a("v_mul_f32 v11, v3, v3")
    a("v_fma_f32 v11, v4, v4, v11")
    a("v_rcp_f32 v12, v11")
    a("v_mul_f32 v13, v10, v3")
    a("v_fma_f32 v13, v19, v4, v13")
    a("v_mul_f32 v14, v19, v3")
    a("v_fma_f32 v14, -v10, v4, v14")
    div_refine(a, 16, 13, 11, 12, 15)
    div_refine(a, 17, 14, 11, 12, 15)
    cmul(a, 20, 21, 18, 19, 18, 19)
    cmul(a, 22, 23, 20, 21, 18, 19)
    cmul(a, 24, 25, 20, 21, 20, 21)
    cmul(a, 28, 29, 24, 25, 24, 25)
    cmul(a, 26, 27, 28, 29, 28, 29)
    cmul(a, 28, 29, 26, 27, 26, 27)
    cmul(a, 30, 31, 28, 29, 28, 29)
    cmul(a, 26, 27, 30, 31, 30, 31)
    a("v_lshlrev_b32 v2, 6, v1")
    a("buffer_store_dwordx4 v[16:19], v2, s[36:39], 0 offen")
    a("buffer_store_dwordx4 v[20:23], v2, s[36:39], 0 offen offset:16")
    a("buffer_store_dwordx4 v[24:27], v2, s[36:39], 0 offen offset:32")
    a("s_endpgm")
    a.lab("K0_ZERO")
    a("s_sub_u32 s3, s2, %d" % K0_C)
    a("s_lshl_b32 s3, s3, 8")
    a("v_add_u32 v1, s3, v0")
    a("v_lshlrev_b32 v1, 4, v1")
    a("v_mov_b32 v4, 0")
    a("v_mov_b32 v5, 0")
    a("v_mov_b32 v6, 0")
    a("v_mov_b32 v7, 0")
    a("s_waitcnt lgkmcnt(0)")
    srd(a, 8, 6, WS_AGG, SZ_AGG)
    a("buffer_store_dwordx4 v[4:7], v1, s[8:11], 0 offen")
    a.lab("K0_END")
    a("s_endpgm")

def desc(name, vg, sg=102, lds_static=0):
    acc = (vg + 3) // 4 * 4
    return """.amdhsa_kernel %s
  .amdhsa_next_free_vgpr %d
  .amdhsa_next_free_sgpr %d
  .amdhsa_accum_offset %d
  .amdhsa_group_segment_fixed_size 0
  .amdhsa_kernarg_size 120
  .amdhsa_user_sgpr_count 2
  .amdhsa_user_sgpr_kernarg_segment_ptr 1
  .amdhsa_system_sgpr_workgroup_id_x 1
  .amdhsa_float_denorm_mode_32 3
.end_amdhsa_kernel
""" % (name, vg, sg, acc)
```

```python
from gen import *

K1_CB = 0
K1_ST = 5120
STG = 24576
K1_LDS = K1_ST + 3 * STG
K1_T = 5120; K1_P = 25600; K1_O2 = 46080
ACC = 12; B0 = 108; B1 = 156; AR = 204

def k1_main(a, NT, ssm):
    nd = NT // 2
    stepJ = 20480 if ssm else 40960
    def acc(rt, ct): return ACC + (rt * NT + ct) * 4
    def dma(it):
        st = it % 3
        for j in range(nd):
            a("s_add_u32 m0, s32, %d" % (K1_ST + st * STG + 4 * j * 1024))
            a("s_add_u32 s35, s31, %d" % (j * stepJ + it * 2048))
            a("buffer_load_dwordx4 v1, s[12:15], s35 offen lds")
    def aload(it):
        base = AR + (it % 3) * 16
        for rt in range(2):
            a("s_add_u32 s35, s%d, %d" % (33 + rt, it * 2048))
            for ks in range(2):
                a("buffer_load_dwordx4 %s, v1, s[8:11], s35 offen offset:%d" % (v(base + (rt * 2 + ks) * 4, 4), ks * 1024))
    def bread(it, ks, dst):
        st = it % 3
        for ct in range(NT):
            off = (ct * 2 + ks) * 1024 + (st * STG if st < 2 else 0)
            a("ds_read_b128 %s, v%d offset:%d" % (v(dst + 4 * ct, 4), 2 if st < 2 else 3, off))
    def mfmas(it, ks, bset):
        for ct in range(NT):
            for rt in range(2):
                Areg = v(AR + (it % 3) * 16 + (rt * 2 + ks) * 4, 4); Breg = v(bset + 4 * ct, 4)
                C = v(acc(rt, ct), 4)
                src = "0" if (it == 0 and ks == 0) else C
                if ssm: a("v_mfma_f32_16x16x32_bf16 %s, %s, %s, %s" % (C, Areg, Breg, src))
                else:   a("v_mfma_f32_16x16x32_bf16 %s, %s, %s, %s" % (C, Breg, Areg, src))
    aload(0); dma(0); aload(1); dma(1); dma(2)
    a("s_waitcnt vmcnt(%d)" % (4 + 2 * nd))
    a("s_barrier")
    bread(0, 0, B0)
    for it in range(10):
        bread(it, 1, B1)
        a("s_waitcnt lgkmcnt(%d)" % NT)
        mfmas(it, 0, B0)
        if it < 9:
            a("s_waitcnt vmcnt(%d) lgkmcnt(0)" % (nd if it <= 7 else 0))
            a("s_barrier")
            if it + 2 <= 9: aload(it + 2)
            if it + 3 <= 9: dma(it + 3)
            bread(it + 1, 0, B0)
        else:
            a("s_waitcnt lgkmcnt(0)")
        mfmas(it, 1, B1)
    a("s_nop 15")
    return acc

def gen_k1(a):
    a.lab("k1_kernel")
    a("s_cmp_ge_u32 s2, 256")
    a("s_cbranch_scc1 K1_END")
    a("s_load_dwordx2 s[6:7], s[0:1], %d" % KA["ws"])
    a("v_lshrrev_b32 v1, 6, v0")
    a("v_and_b32 v4, 63, v0")
    a("s_nop 0")
    a("v_readfirstlane_b32 s28, v1")
    a("s_and_b32 s3, s2, 7")
    a("s_lshr_b32 s4, s2, 3")
    a("s_lshl_b32 s29, s3, 1")
    a("s_lshr_b32 s5, s4, 4")
    a("s_add_u32 s29, s29, s5")
    a("s_and_b32 s30, s4, 15")
    a("v_and_b32 v5, 15, v4")
    a("v_lshrrev_b32 v6, 4, v4")
    a("v_lshlrev_b32 v1, 4, v4")
    a("v_lshlrev_b32 v2, 4, v4")
    a("v_add_u32 v3, %d, v2" % (K1_ST + 2 * STG))
    a("v_add_u32 v2, %d, v2" % K1_ST)
    a("s_lshl_b32 s32, s28, 10")
    a("s_lshl_b32 s33, s29, 3")
    a("s_lshl_b32 s3, s28, 1")
    a("s_add_u32 s45, s33, s3")
    a("s_mul_i32 s33, s45, 20480")
    a("s_add_u32 s34, s33, 20480")
    a("s_waitcnt lgkmcnt(0)")
    srd(a, 8, 6, WS_XN, SZ_XN)
    a("s_cmp_ge_u32 s30, 8")
    a("s_cbranch_scc1 K1_FFN")
    srd(a, 12, 6, WS_BRE, 2 * SZ_SQ)
    srd(a, 16, 6, WS_CONST, SZ_CONST)
    srd(a, 20, 6, WS_AGG, SZ_AGG)
    srd(a, 24, 6, WS_H, SZ_H)
    a("s_mul_i32 s31, s30, %d" % (5 * 20480))
    a("s_and_b32 s3, s28, 1")
    a("s_lshl_b32 s3, s3, 10")
    a("s_add_u32 s31, s31, s3")
    a("s_lshr_b32 s3, s28, 1")
    a("s_mul_i32 s3, s3, %d" % SZ_SQ)
    a("s_add_u32 s31, s31, s3")
    a("v_lshlrev_b32 v7, 4, v4")
    a("s_mul_i32 s3, s30, 5120")
    a("s_add_u32 s35, s3, s32")
    a("s_add_u32 m0, s32, %d" % K1_CB)
    a("s_add_u32 s3, s3, 4096")
    a("buffer_load_dwordx4 v7, s[16:19], s35 offen lds")
    a("s_mov_b32 m0, %d" % (K1_CB + 4096))
    a("s_nop 0")
    a("buffer_load_dwordx4 v7, s[16:19], s3 offen lds")
    acc = k1_main(a, 10, True)
    a("s_barrier")
    CU = lambda u: 108 + 12 * u
    a("v_lshlrev_b32 v7, 6, v5")
    for u in range(5):
        for k in range(3):
            a("ds_read_b128 %s, v7 offset:%d" % (v(CU(u) + 4 * k, 4), K1_CB + u * 1024 + 16 * k))
    a("s_lshl_b32 s3, s28, 3")
    a("v_add_u32 v8, s3, v6")
    a("v_mul_u32_u24 v8, 640, v8")
    a("v_lshl_add_u32 v8, v5, 3, v8")
    a("s_waitcnt lgkmcnt(0)")
    for u in range(5):
        cr, ci, lr, li = CU(u), CU(u) + 1, CU(u) + 2, CU(u) + 3
        for rt in range(2):
            R = acc(rt, 2 * u); I = acc(rt, 2 * u + 1)
            for r in range(4):
                a("v_mul_f32 v9, v%d, v%d" % (ci, I + r))
                a("v_mul_f32 v%d, v%d, v%d" % (I + r, cr, I + r))
                a("v_fma_f32 v%d, v%d, v%d, v%d" % (I + r, ci, R + r, I + r))
                a("v_fma_f32 v%d, v%d, v%d, -v9" % (R + r, cr, R + r))
            for r in range(1, 4):
                a("v_fma_f32 v%d, v%d, v%d, v%d" % (R + r, lr, R + r - 1, R + r))
                a("v_fma_f32 v%d, v%d, v%d, v%d" % (I + r, lr, I + r - 1, I + r))
                a("v_fma_f32 v%d, -v%d, v%d, v%d" % (R + r, li, I + r - 1, R + r))
                a("v_fma_f32 v%d, v%d, v%d, v%d" % (I + r, li, R + r - 1, I + r))
            o = K1_T + rt * 2560 + u * 128
            a("v_add_u32 v9, %d, v8" % o)
            a("ds_write2_b32 v9, v%d, v%d offset0:0 offset1:1" % (R + 3, I + 3))
    a("s_waitcnt lgkmcnt(0)")
    a("s_barrier")
    TV = 168; S0 = 232; S1 = 234; L4 = 236; PUB = 240; VA = 244; VG = 245; BAD = 246; TMP = 247
    a("s_mov_b64 s[40:41], exec")
    a("s_mov_b64 exec, 0xfffff")
    a("s_mul_i32 s3, s28, 20")
    a("v_add_u32 v%d, s3, v4" % TMP)
    a("v_lshlrev_b32 v%d, 3, v%d" % (VA, TMP))
    a("v_lshlrev_b32 v%d, 4, v%d" % (VG, TMP))
    a("v_lshlrev_b32 v%d, 6, v%d" % (TMP, TMP))
    a("ds_read_b128 %s, v%d offset:%d" % (v(L4, 4), TMP, K1_CB + 32))
    def readT():
        for g in range(32):
            a("ds_read_b64 %s, v%d offset:%d" % (v(TV + 2 * g, 2), VA, K1_T + g * 640))
    def horner(src, dst, mr, mi, tr, ti):
        a("v_fma_f32 v%d, v%d, v%d, v%d" % (dst, mr, src, tr))
        a("v_fma_f32 v%d, v%d, v%d, v%d" % (dst + 1, mr, src + 1, ti))
        a("v_fma_f32 v%d, -v%d, v%d, v%d" % (dst, mi, src + 1, dst))
        a("v_fma_f32 v%d, v%d, v%d, v%d" % (dst + 1, mi, src, dst + 1))
    readT()
    a("s_waitcnt lgkmcnt(0)")
    a("v_mov_b32 v%d, v%d" % (S0, TV))
    a("v_mov_b32 v%d, v%d" % (S0 + 1, TV + 1))
    cur = S0
    for g in range(1, 32):
        nxt = S1 if cur == S0 else S0
        horner(cur, nxt, L4, L4 + 1, TV + 2 * g, TV + 2 * g + 1)
        cur = nxt
    a("v_mov_b32 v%d, v%d" % (PUB, cur))
    a("v_mov_b32 v%d, 1" % (PUB + 1))
    a("v_mov_b32 v%d, v%d" % (PUB + 2, cur + 1))
    a("v_mov_b32 v%d, 1" % (PUB + 3))
    a("s_lshl_b32 s42, s30, 4")
    a("s_mul_i32 s42, s42, 1280")
    a("s_mul_i32 s3, s29, 1280")
    a("s_add_u32 s3, s3, s42")
    a("buffer_store_dwordx4 %s, v%d, s[20:23], s3 offen sc0 sc1" % (v(PUB, 4), VG))
    a("s_mov_b32 s43, 0")
    a.lab("K1_POLL")
    for c in range(15):
        a("s_cmp_le_u32 s29, %d" % c)
        a("s_cbranch_scc1 K1_LOADED")
        a("s_add_u32 s35, s42, %d" % (c * 1280))
        a("buffer_load_dwordx4 %s, v%d, s[20:23], s35 offen sc0 sc1" % (v(TV + 4 * c, 4), VG))
    a.lab("K1_LOADED")
    a("s_waitcnt vmcnt(0)")
    a("v_mov_b32 v%d, 0" % BAD)
    for c in range(15):
        a("s_cmp_le_u32 s29, %d" % c)
        a("s_cbranch_scc1 K1_CHK")
        a("v_xor_b32 v%d, 1, v%d" % (TMP, TV + 4 * c + 1))
        a("v_or_b32 v%d, v%d, v%d" % (BAD, BAD, TMP))
        a("v_xor_b32 v%d, 1, v%d" % (TMP, TV + 4 * c + 3))
        a("v_or_b32 v%d, v%d, v%d" % (BAD, BAD, TMP))
    a.lab("K1_CHK")
    a("v_cmp_ne_u32 vcc, 0, v%d" % BAD)
    a("s_add_u32 s43, s43, 1")
    a("s_cmp_ge_u32 s43, 0x40000")
    a("s_cbranch_scc1 K1_GOT")
    a("s_nop 4")
    a("s_cbranch_vccnz K1_POLL")
    a.lab("K1_GOT")
    a("v_mov_b32 v%d, 0" % S0)
    a("v_mov_b32 v%d, 0" % (S0 + 1))
    for c in range(15):
        a("s_cmp_le_u32 s29, %d" % c)
        a("s_cbranch_scc1 K1_CARRY")
        horner(S0, S1, L4 + 2, L4 + 3, TV + 4 * c, TV + 4 * c + 2)
        a("v_mov_b32 v%d, v%d" % (S0, S1))
        a("v_mov_b32 v%d, v%d" % (S0 + 1, S1 + 1))
    a.lab("K1_CARRY")
    readT()
    a("s_waitcnt lgkmcnt(0)")
    cur = S0
    for g in range(32):
        a("ds_write_b64 v%d, %s offset:%d" % (VA, v(cur, 2), K1_P + g * 640))
        if g < 31:
            nxt = S1 if cur == S0 else S0
            horner(cur, nxt, L4, L4 + 1, TV + 2 * g, TV + 2 * g + 1)
            cur = nxt
    a("s_mov_b64 exec, s[40:41]")
    a("s_waitcnt lgkmcnt(0)")
    a("s_barrier")
    PV = 168
    for u in range(5):
        for rt in range(2):
            a("ds_read_b64 %s, v8 offset:%d" % (v(PV + 4 * u + 2 * rt, 2), K1_P + rt * 2560 + u * 128))
    a("s_mul_i32 s3, s28, 10240")
    a("s_add_u32 s4, s3, %d" % K1_T)
    a("s_add_u32 s5, s3, %d" % (K1_O2 - 20480))
    a("s_cmp_lt_u32 s28, 2")
    a("s_cselect_b32 s44, s4, s5")
    a("v_lshlrev_b32 v7, 6, v6")
    a("v_and_b32 v9, 7, v5")
    a("v_lshl_add_u32 v7, v9, 1, v7")
    a("v_lshrrev_b32 v9, 3, v5")
    a("v_lshl_add_u32 v7, v9, 8, v7")
    a("v_add_u32 v7, s44, v7")
    a("s_waitcnt lgkmcnt(0)")
    for u in range(5):
        for rt in range(2):
            R = acc(rt, 2 * u); I = acc(rt, 2 * u + 1)
            Pr = PV + 4 * u + 2 * rt; Pi = Pr + 1
            for r in range(4):
                mr = CU(u) + 2 + 2 * r; mi = mr + 1
                a("v_fma_f32 v%d, v%d, v%d, v%d" % (R + r, mr, Pr, R + r))
                a("v_fma_f32 v%d, v%d, v%d, v%d" % (I + r, mr, Pi, I + r))
                a("v_fma_f32 v%d, -v%d, v%d, v%d" % (R + r, mi, Pi, R + r))
                a("v_fma_f32 v%d, v%d, v%d, v%d" % (I + r, mi, Pr, I + r))
                a("v_cvt_pk_bf16_f32 v%d, v%d, v%d" % (R + r, R + r, I + r))
                o = rt * 2560 + u * 512 + r * 16
                a("ds_write_b16 v7, v%d offset:%d" % (R + r, o))
                a("ds_write_b16_d16_hi v7, v%d offset:%d" % (R + r, o + 5120))
    a("v_lshlrev_b32 v7, 4, v4")
    a("v_add_u32 v7, s44, v7")
    a("s_mul_i32 s3, s45, 20480")
    a("s_mul_i32 s4, s30, 2560")
    a("s_add_u32 s3, s3, s4")
    a("s_waitcnt lgkmcnt(0)")
    for j in range(10):
        a("ds_read_b128 %s, v7 offset:%d" % (v(168 + 4 * j, 4), 1024 * j))
    for j in range(10):
        d = 210 + j
        a("v_add_u32 v9, %d, v4" % (64 * j))
        a("v_mul_u32_u24 v10, 0xcccd, v9")
        a("v_lshrrev_b32 v10, 23, v10")
        a("v_mul_u32_u24 v11, 160, v10")
        a("v_sub_u32 v11, v9, v11")
        a("v_and_b32 v9, 1, v10")
        a("v_mul_u32_u24 v9, 20480, v9")
        a("v_lshrrev_b32 v10, 1, v10")
        a("v_mul_u32_u24 v10, %d, v10" % SZ_XN)
        a("v_add_u32 v9, v9, v10")
        a("v_lshl_add_u32 v%d, v11, 4, v9" % d)
    for j in range(10):
        a("s_waitcnt lgkmcnt(%d)" % (9 - j))
        a("buffer_store_dwordx4 %s, v%d, s[24:27], s3 offen" % (v(168 + 4 * j, 4), 210 + j))
    a("s_endpgm")
    a.lab("K1_FFN")
    srd(a, 12, 6, WS_W1T, SZ_W)
    srd(a, 24, 6, WS_H1, SZ_H1)
    a("s_sub_u32 s30, s30, 8")
    a("s_mul_i32 s31, s30, 12")
    a("s_lshr_b32 s3, s28, 1")
    a("s_add_u32 s31, s31, s3")
    a("s_mul_i32 s31, s31, 20480")
    a("s_and_b32 s3, s28, 1")
    a("s_lshl_b32 s3, s3, 10")
    a("s_add_u32 s31, s31, s3")
    acc = k1_main(a, 12, False)
    a("v_lshlrev_b32 v7, 4, v5")
    a("v_and_b32 v9, 1, v6")
    a("v_lshl_add_u32 v7, v9, 3, v7")
    a("v_lshrrev_b32 v9, 1, v6")
    a("v_lshl_add_u32 v7, v9, 8, v7")
    a("s_mul_i32 s36, s45, 49152")
    a("s_mul_i32 s4, s30, 6144")
    a("s_add_u32 s36, s36, s4")
    a("s_add_u32 s37, s36, 4096")
    a("s_add_u32 s38, s36, 49152")
    a("s_add_u32 s39, s36, %d" % (49152 + 4096))
    a("s_mov_b32 s5, %s" % fhex(-1.4426950408889634))
    T = 108
    for rt in range(2):
        for ct in range(12):
            C = acc(rt, ct)
            t = T + ((rt * 12 + ct) % 4) * 12
            a("v_cvt_pk_bf16_f32 v%d, v%d, v%d" % (t, C, C + 1))
            a("v_cvt_pk_bf16_f32 v%d, v%d, v%d" % (t + 1, C + 2, C + 3))
            a("v_lshlrev_b32 v%d, 16, v%d" % (C, t))
            a("v_and_b32 v%d, 0xffff0000, v%d" % (C + 1, t))
            a("v_lshlrev_b32 v%d, 16, v%d" % (C + 2, t + 1))
            a("v_and_b32 v%d, 0xffff0000, v%d" % (C + 3, t + 1))
            for r in range(4): a("v_mul_f32 v%d, s5, v%d" % (t + 2 + r, C + r))
            for r in range(4): a("v_exp_f32 v%d, v%d" % (t + 2 + r, t + 2 + r))
            for r in range(4): a("v_add_f32 v%d, 1.0, v%d" % (t + 2 + r, t + 2 + r))
            for r in range(4): a("v_rcp_f32 v%d, v%d" % (t + 2 + r, t + 2 + r))
            for r in range(4): a("v_mul_f32 v%d, v%d, v%d" % (t + 2 + r, C + r, t + 2 + r))
            a("v_cvt_pk_bf16_f32 v%d, v%d, v%d" % (t + 6, t + 2, t + 3))
            a("v_cvt_pk_bf16_f32 v%d, v%d, v%d" % (t + 7, t + 4, t + 5))
            a("buffer_store_dwordx2 %s, v7, s[24:27], s%d offen offset:%d" % (v(t + 6, 2), 36 + 2 * rt + (ct // 8), (ct % 8) * 512))
    a.lab("K1_END")
    a("s_endpgm")

K3_PITCH = 84 * 4
K3_PART = 64 * K3_PITCH
K3_LDS = 4 * K3_PART
K3_D = 3
def k3_main(a, nsteps, tag):
    RING = 92
    def acc(i, j): return 12 + (i * 5 + j) * 4
    def loads(s):
        base = RING + (s % K3_D) * 36
        for i in range(4):
            a("buffer_load_dwordx4 %s, v1, s[8:11], s%d offen offset:%d" % (v(base + 4 * i, 4), 36 + i, (s % 4) * 1024))
        for j in range(5):
            a("buffer_load_dwordx4 %s, v1, s[12:15], s%d offen offset:%d" % (v(base + 16 + 4 * j, 4), 40 + j, (s % 4) * 1024))
        if s % 4 == 3: a("v_add_u32 v1, 4096, v1")
    for s in range(K3_D): loads(s)
    for s in range(nsteps):
        inflight = min(K3_D - 1, nsteps - 1 - s)
        a("s_waitcnt vmcnt(%d)" % (9 * inflight))
        base = RING + (s % K3_D) * 36
        for i in range(4):
            for j in range(5):
                C = v(acc(i, j), 4)
                a("v_mfma_f32_16x16x32_bf16 %s, %s, %s, %s" % (C, v(base + 4 * i, 4), v(base + 16 + 4 * j, 4), "0" if s == 0 else C))
        if s + K3_D < nsteps: loads(s + K3_D)
    a("s_branch K3_EPI")

def gen_k3(a):
    a.lab("k3_kernel")
    a("s_cmp_ge_u32 s2, 256")
    a("s_cbranch_scc1 K3_END")
    a("s_load_dwordx2 s[6:7], s[0:1], %d" % KA["ws"])
    a("s_load_dwordx2 s[52:53], s[0:1], %d" % KA["x"])
    a("s_load_dwordx2 s[54:55], s[0:1], %d" % KA["dsk"])
    a("s_load_dwordx2 s[56:57], s[0:1], %d" % KA["out"])
    a("v_lshrrev_b32 v1, 6, v0")
    a("v_and_b32 v4, 63, v0")
    a("s_nop 0")
    a("v_readfirstlane_b32 s28, v1")
    a("s_and_b32 s3, s2, 7")
    a("s_lshr_b32 s4, s2, 3")
    a("s_lshl_b32 s29, s3, 2")
    a("s_lshr_b32 s5, s4, 3")
    a("s_add_u32 s29, s29, s5")
    a("s_and_b32 s30, s4, 7")
    a("v_and_b32 v5, 15, v4")
    a("v_lshrrev_b32 v6, 4, v4")
    a("v_lshlrev_b32 v1, 4, v4")
    a("s_waitcnt lgkmcnt(0)")
    a("s_cmp_ge_u32 s28, 2")
    a("s_cbranch_scc1 K3_FFNW")
    srd(a, 8, 6, WS_H, SZ_H)
    srd(a, 12, 6, WS_CRE, 2 * SZ_SQ)
    a("s_mul_i32 s36, s29, %d" % (4 * 20480))
    a("s_mul_i32 s3, s28, %d" % SZ_XN)
    a("s_add_u32 s36, s36, s3")
    for i in range(1, 4): a("s_add_u32 s%d, s36, %d" % (36 + i, i * 20480))
    a("s_mul_i32 s40, s30, %d" % (5 * 20480))
    a("s_mul_i32 s3, s28, %d" % SZ_SQ)
    a("s_add_u32 s40, s40, s3")
    for j in range(1, 5): a("s_add_u32 s%d, s40, %d" % (40 + j, j * 20480))
    k3_main(a, 20, "S")
    a.lab("K3_FFNW")
    srd(a, 8, 6, WS_H1, SZ_H1)
    srd(a, 12, 6, WS_W2T, SZ_W)
    a("s_mul_i32 s36, s29, %d" % (4 * 49152))
    a("s_sub_u32 s3, s28, 2")
    a("s_mul_i32 s3, s3, 24576")
    a("s_add_u32 s36, s36, s3")
    for i in range(1, 4): a("s_add_u32 s%d, s36, %d" % (36 + i, i * 49152))
    a("s_mul_i32 s40, s30, %d" % (5 * 49152))
    a("s_add_u32 s40, s40, s3")
    for j in range(1, 5): a("s_add_u32 s%d, s40, %d" % (40 + j, j * 49152))
    k3_main(a, 24, "F")
    a.lab("K3_EPI")
    srd(a, 16, 52, 0, SZ_XN)
    srd(a, 20, 6, WS_XN, SZ_XN)
    srd(a, 24, 54, 0, 1280)
    srd(a, 32, 56, 0, 2048 * 640 * 4)
    a("s_mul_i32 s3, s29, %d" % (64 * 1280))
    a("s_mul_i32 s4, s30, 160")
    a("s_add_u32 s3, s3, s4")
    a("s_lshl_b32 s5, s3, 1")
    a("s_mul_i32 s46, s29, %d" % (4 * 20480))
    a("s_mul_i32 s47, s30, 2560")
    a("s_add_u32 s46, s46, s47")
    E = 92
    for j in range(5):
        b = E + 8 * j
        a("v_add_u32 v7, %d, v0" % (256 * j))
        a("v_mul_u32_u24 v8, 0xcccd, v7")
        a("v_lshrrev_b32 v8, 20, v8")
        a("v_mul_u32_u24 v9, 20, v8")
        a("v_sub_u32 v9, v7, v9")
        a("v_mul_u32_u24 v%d, 1280, v8" % b)
        a("v_lshl_add_u32 v%d, v9, 3, v%d" % (b, b))
        a("v_mul_u32_u24 v%d, %d, v8" % (b + 1, K3_PITCH))
        a("v_lshl_add_u32 v%d, v9, 4, v%d" % (b + 1, b + 1))
        a("v_lshlrev_b32 v9, 3, v9")
        a("buffer_load_dwordx2 %s, v%d, s[16:19], s3 offen" % (v(b + 2, 2), b))
        a("v_lshrrev_b32 v10, 4, v8")
        a("v_mul_u32_u24 v10, 20480, v10")
        a("v_and_b32 v11, 15, v8")
        a("v_lshl_add_u32 v10, v11, 4, v10")
        a("v_lshrrev_b32 v11, 4, v9")
        a("v_lshl_add_u32 v10, v11, 8, v10")
        a("v_and_b32 v11, 8, v9")
        a("v_add_u32 v10, v10, v11")
        a("buffer_load_dwordx2 %s, v10, s[20:23], s46 offen" % (v(b + 4, 2)))
        a("buffer_load_dwordx2 %s, v9, s[24:27], s4 offen" % (v(b + 6, 2)))
    a("v_mul_u32_u24 v7, %d, v6" % (4 * K3_PITCH))
    a("v_lshl_add_u32 v7, v5, 2, v7")
    a("s_mul_i32 s10, s28, %d" % K3_PART)
    a("v_add_u32 v7, s10, v7")
    a("s_nop 7")
    for i in range(4):
        for j in range(5):
            for r in range(4):
                a("ds_write_b32 v7, v%d offset:%d" % (12 + (i * 5 + j) * 4 + r, (16 * i + r) * K3_PITCH + j * 64))
    a("s_waitcnt lgkmcnt(0)")
    a("s_barrier")
    a("s_mov_b32 s11, %s" % fhex(-1.4426950408889634))
    P = 140
    for j in range(5):
        b = E + 8 * j
        for w in range(4):
            a("ds_read_b128 %s, v%d offset:%d" % (v(P + 16 * j + 4 * w, 4), b + 1, w * K3_PART))
    a("s_waitcnt vmcnt(0)")
    for j in range(5):
        b = E + 8 * j; p = P + 16 * j
        a("s_waitcnt lgkmcnt(%d)" % min(15, 4 * (4 - j)))
        for e in range(4):
            src = b + 2 + e // 2
            def unpack(d, s):
                if e % 2 == 0: a("v_lshlrev_b32 v%d, 16, v%d" % (d, s))
                else: a("v_and_b32 v%d, 0xffff0000, v%d" % (d, s))
            unpack(12, b + 2 + e // 2)
            unpack(13, b + 4 + e // 2)
            unpack(14, b + 6 + e // 2)
            a("v_mul_f32 v13, v13, v14")
            bf16r(a, 13, 13)
            a("v_sub_f32 v15, v%d, v%d" % (p + e, p + 4 + e))
            a("v_fma_f32 v15, 2.0, v15, v13")
            a("v_add_f32 v16, v%d, v%d" % (p + 8 + e, p + 12 + e))
            bf16r(a, 16, 16)
            a("v_mul_f32 v17, s11, v16")
            a("v_exp_f32 v17, v17")
            a("s_nop 0")
            a("v_add_f32 v17, 1.0, v17")
            a("v_rcp_f32 v17, v17")
            a("s_nop 0")
            a("v_mul_f32 v17, v16, v17")
            bf16r(a, 17, 17)
            a("v_mul_f32 v15, v15, v17")
            a("v_add_f32 v%d, v12, v15" % (p + e))
        a("v_lshlrev_b32 v18, 1, v%d" % b)
        a("buffer_store_dwordx4 %s, v18, s[32:35], s5 offen" % v(p, 4))
        a("s_nop 1")
    a.lab("K3_END")
    a("s_endpgm")
```

```python
import sys, struct
NAME = "recurrent_scan__ssm_conv_s5__dense_activation_silu__prompt"

WS_XN    = 0x000000
WS_W1T   = 0x280000
WS_W2T   = 0x460000
WS_CONST = 0x640000
WS_AGG   = 0x1600000
WS_H     = 0x680000
WS_H1    = 0xB80000
WS_BRE   = 0x1180000
WS_BIM   = 0x1248000
WS_CRE   = 0x1310000
WS_CIM   = 0x13D8000
SZ_SQ = 640*640*2
SZ_XN = 2048*640*2; SZ_W = 640*1536*2; SZ_CONST = 640*64; SZ_PW = 640*256; SZ_AGG = 8*16*80*16
SZ_H = 2048*1280*2; SZ_H1 = 2048*1536*2

KA = dict(x=0, lre=8, lim=16, bre=24, bim=32, cre=40, cim=48, ldt=56, dsk=64, bx=72, w1=80, w2=88, out=96, dbg=104, ws=112)

def f2u(f):
    return struct.unpack("<I", struct.pack("<f", f))[0]
def fhex(f):
    return "0x%08x" % f2u(f)

class A:
    def __init__(s):
        s.L = []
    def __call__(s, t):
        for l in t.strip("\n").split("\n"):
            l = l.strip()
            if l: s.L.append("    " + l)
    def lab(s, l): s.L.append(l + ":")
    def c(s, t): s.L.append("    ; " + t)
    def text(s): return "\n".join(s.L) + "\n"

def v(i, n=1):
    return "v%d" % i if n == 1 else "v[%d:%d]" % (i, i + n - 1)
def sr(i, n=1):
    return "s%d" % i if n == 1 else "s[%d:%d]" % (i, i + n - 1)

def srd(a, d, base, off, size):
    if off:
        a("s_add_u32 s%d, s%d, 0x%x" % (d, base, off))
        a("s_addc_u32 s%d, s%d, 0" % (d + 1, base + 1))
    else:
        a("s_mov_b32 s%d, s%d" % (d, base))
        a("s_mov_b32 s%d, s%d" % (d + 1, base + 1))
    a("s_and_b32 s%d, s%d, 0xffff" % (d + 1, d + 1))
    a("s_mov_b32 s%d, 0x%x" % (d + 2, size))
    a("s_mov_b32 s%d, 0x00020000" % (d + 3))

def wave_sum(a, x, t):
    for p in ["quad_perm:[1,0,3,2]", "quad_perm:[2,3,0,1]", "row_half_mirror", "row_mirror"]:
        a("s_nop 1")
        a("v_add_f32_dpp v%d, v%d, v%d %s row_mask:0xf bank_mask:0xf" % (t, x, x, p))
        a("v_mov_b32 v%d, v%d" % (x, t))
    a("s_nop 1")
    for i in range(4):
        a("v_readlane_b32 s%d, v%d, %d" % (20 + i, x, 16 * i))
    a("s_nop 1")
    a("v_mov_b32 v%d, s20" % x)
    a("v_add_f32 v%d, s21, v%d" % (x, x))
    a("v_mov_b32 v%d, s22" % t)
    a("v_add_f32 v%d, s23, v%d" % (t, t))
    a("v_add_f32 v%d, v%d, v%d" % (x, x, t))

def div_refine(a, q, n, d, r, t):
    a("v_mul_f32 v%d, v%d, v%d" % (q, n, r))
    a("v_fma_f32 v%d, -v%d, v%d, v%d" % (t, q, d, n))
    a("v_fma_f32 v%d, v%d, v%d, v%d" % (q, t, r, q))

def bf16r(a, d, x):
    a("v_cvt_pk_bf16_f32 v%d, v%d, v%d" % (d, x, x))
    a("v_lshlrev_b32 v%d, 16, v%d" % (d, d))

def exp_acc(a, d, x, t0, t1):
    a("v_mul_f32 v%d, s30, v%d" % (t0, x))
    a("v_fma_f32 v%d, v%d, s30, -v%d" % (t1, x, t0))
    a("v_fma_f32 v%d, v%d, s31, v%d" % (t1, x, t1))
    a("v_exp_f32 v%d, v%d" % (d, t0))
    a("v_mul_f32 v%d, s32, v%d" % (t1, t1))
    a("v_fma_f32 v%d, v%d, v%d, v%d" % (d, d, t1, d))

def cmul(a, dr, di, ar, ai, br, bi):
    a("v_mul_f32 v%d, v%d, v%d" % (dr, ar, br))
    a("v_fma_f32 v%d, -v%d, v%d, v%d" % (dr, ai, bi, dr))
    a("v_mul_f32 v%d, v%d, v%d" % (di, ar, bi))
    a("v_fma_f32 v%d, v%d, v%d, v%d" % (di, ai, br, di))

K0_LN = 128; K0_CP = K0_LN + 160; K0_T1 = K0_CP + 240; K0_T2 = K0_T1 + 240; K0_C = K0_T2 + 3; K0_Z = K0_C + 40
K0_LDS = 20480
def wave_sum4(a, xs, ts):
    for p in ["quad_perm:[1,0,3,2]", "quad_perm:[2,3,0,1]", "row_half_mirror", "row_mirror"]:
        for x, t in zip(xs, ts):
            a("v_add_f32_dpp v%d, v%d, v%d %s row_mask:0xf bank_mask:0xf" % (t, x, x, p))
        for x, t in zip(xs, ts):
            a("v_mov_b32 v%d, v%d" % (x, t))
        a("s_nop 1")
    for n, x in enumerate(xs):
        for i in range(4):
            a("v_readlane_b32 s%d, v%d, %d" % (40 + 4 * n + i, x, 16 * i))
    a("s_nop 1")
    for n, (x, t) in enumerate(zip(xs, ts)):
        a("v_mov_b32 v%d, s%d" % (x, 40 + 4 * n))
        a("v_add_f32 v%d, s%d, v%d" % (x, 41 + 4 * n, x))
        a("v_mov_b32 v%d, s%d" % (t, 42 + 4 * n))
        a("v_add_f32 v%d, s%d, v%d" % (t, 43 + 4 * n, t))
        a("v_add_f32 v%d, v%d, v%d" % (x, x, t))

def gen_k0(a):
    a.lab("k0_kernel")
    a("s_cmp_ge_u32 s2, %d" % K0_Z)
    a("s_cbranch_scc1 K0_END")
    a("s_load_dwordx2 s[6:7], s[0:1], %d" % KA["ws"])
    a("s_cmp_ge_u32 s2, %d" % K0_LN)
    a("s_cbranch_scc1 K0_NOTLN")
    a("s_load_dwordx2 s[4:5], s[0:1], %d" % KA["x"])
    a("v_lshrrev_b32 v1, 6, v0")
    a("v_and_b32 v2, 63, v0")
    a("v_lshlrev_b32 v1, 2, v1")
    a("v_lshlrev_b32 v3, 8, v2")
    a("v_lshl_add_u32 v3, v1, 4, v3")
    a("v_lshrrev_b32 v4, 2, v2")
    a("v_lshlrev_b32 v4, 8, v4")
    a("v_and_b32 v5, 3, v2")
    a("v_lshl_add_u32 v4, v5, 2, v4")
    a("v_lshl_add_u32 v4, v1, 4, v4")
    a("v_add_u32 v4, %d, v4" % (64 * 256))
    a("s_lshl_b32 s3, s2, 4")
    a("v_add_u32 v1, s3, v1")
    a("v_mul_u32_u24 v1, 1280, v1")
    a("v_lshlrev_b32 v5, 2, v2")
    a("v_add_u32 v5, v5, v1")
    a("v_lshlrev_b32 v2, 4, v2")
    a("v_add_u32 v2, v2, v1")
    a("s_waitcnt lgkmcnt(0)")
    srd(a, 8, 4, 0, SZ_XN)
    srd(a, 12, 6, WS_XN, SZ_XN)
    RB = lambda n: 16 + 24 * n
    for n in range(4):
        a("s_mov_b32 s3, %d" % (1280 * n))
        a("buffer_load_dwordx4 %s, v2, s[8:11], s3 offen" % (v(RB(n), 4)))
        a("buffer_load_dword v%d, v5, s[8:11], s3 offen offset:1024" % (RB(n) + 4))
    a("v_mov_b32 v8, %s" % fhex(640.0))
    a("v_mov_b32 v9, %s" % fhex(1.0 / 640.0))
    a("s_waitcnt vmcnt(0)")
    for n in range(4):
        b = RB(n)
        for i in range(5):
            a("v_lshlrev_b32 v%d, 16, v%d" % (b + 6 + 2 * i, b + i))
            a("v_and_b32 v%d, 0xffff0000, v%d" % (b + 7 + 2 * i, b + i))
        a("v_add_f32 v%d, v%d, v%d" % (b + 16, b + 6, b + 7))
        a("v_add_f32 v%d, v%d, v%d" % (b + 17, b + 8, b + 9))
        a("v_add_f32 v%d, v%d, v%d" % (b + 18, b + 10, b + 11))
        a("v_add_f32 v%d, v%d, v%d" % (b + 19, b + 12, b + 13))
        a("v_add_f32 v%d, v%d, v%d" % (b + 20, b + 14, b + 15))
        a("v_add_f32 v%d, v%d, v%d" % (b + 16, b + 16, b + 17))
        a("v_add_f32 v%d, v%d, v%d" % (b + 18, b + 18, b + 19))
        a("v_add_f32 v%d, v%d, v%d" % (b + 16, b + 16, b + 18))
        a("v_add_f32 v%d, v%d, v%d" % (b + 16, b + 16, b + 20))
    a("s_nop 1")
    wave_sum4(a, [RB(n) + 16 for n in range(4)], [RB(n) + 17 for n in range(4)])
    for n in range(4):
        b = RB(n)
        div_refine(a, b + 18, b + 16, 8, 9, b + 17)
        a("v_mov_b32 v%d, 0" % (b + 16))
        for i in range(10):
            a("v_sub_f32 v%d, v%d, v%d" % (b + 17, b + 6 + i, b + 18))
            a("v_fma_f32 v%d, v%d, v%d, v%d" % (b + 16, b + 17, b + 17, b + 16))
    a("s_nop 1")
    wave_sum4(a, [RB(n) + 16 for n in range(4)], [RB(n) + 17 for n in range(4)])
    for n in range(4):
        b = RB(n)
        div_refine(a, b + 19, b + 16, 8, 9, b + 17)
        bf16r(a, b + 18, b + 18)
        bf16r(a, b + 19, b + 19)
        a("v_add_f32 v%d, %s, v%d" % (b + 19, fhex(1e-5), b + 19))
        bf16r(a, b + 19, b + 19)
        a("v_sqrt_f32 v%d, v%d" % (b + 20, b + 19))
        a("s_nop 0")
        a("v_rcp_f32 v%d, v%d" % (b + 21, b + 20))
        a("v_fma_f32 v%d, -v%d, v%d, v%d" % (b + 17, b + 20, b + 20, b + 19))
        a("v_mul_f32 v%d, 0.5, v%d" % (b + 21, b + 21))
        a("v_fma_f32 v%d, v%d, v%d, v%d" % (b + 20, b + 17, b + 21, b + 20))
        bf16r(a, b + 20, b + 20)
        a("v_rcp_f32 v%d, v%d" % (b + 21, b + 20))
        a("s_nop 0")
        for i in range(5):
            a("v_sub_f32 v%d, v%d, v%d" % (b + 16, b + 6 + 2 * i, b + 18))
            a("v_sub_f32 v%d, v%d, v%d" % (b + 17, b + 7 + 2 * i, b + 18))
            a("v_cvt_pk_bf16_f32 v%d, v%d, v%d" % (b + 16, b + 16, b + 17))
            a("v_and_b32 v%d, 0xffff0000, v%d" % (b + 17, b + 16))
            a("v_lshlrev_b32 v%d, 16, v%d" % (b + 16, b + 16))
            div_refine(a, b + 22, b + 16, b + 20, b + 21, b + 5)
            div_refine(a, b + 23, b + 17, b + 20, b + 21, b + 5)
            a("v_cvt_pk_bf16_f32 v%d, v%d, v%d" % (b + i, b + 22, b + 23))
        a("ds_write_b128 v3, %s offset:%d" % (v(b, 4), 16 * n))
        a("ds_write_b32 v4, v%d offset:%d" % (b + 4, 16 * n))
    a("v_lshlrev_b32 v1, 4, v0")
    a("s_mul_i32 s3, s2, 20480")
    a("s_waitcnt lgkmcnt(0)")
    a("s_barrier")
    for j in range(5):
        a("ds_read_b128 %s, v1 offset:%d" % (v(16 + 4 * j, 4), 4096 * j))
    for j in range(5):
        a("s_waitcnt lgkmcnt(%d)" % (4 - j))
        a("s_add_u32 s4, s3, %d" % (4096 * j))
        a("buffer_store_dwordx4 %s, v1, s[12:15], s4 offen" % v(16 + 4 * j, 4))
    a("s_endpgm")
    a.lab("K0_NOTLN")
    a("s_cmp_ge_u32 s2, %d" % K0_CP)
    a("s_cbranch_scc1 K0_NOTCP")
    a("s_load_dwordx8 s[16:23], s[0:1], %d" % KA["bre"])
    a("s_sub_u32 s3, s2, %d" % K0_LN)
    a("s_mul_hi_u32 s24, s3, 0x%x" % ((2**32 + 39) // 40))
    a("s_mul_i32 s25, s24, 40")
    a("s_sub_u32 s25, s3, s25")
    a("v_and_b32 v1, 15, v0")
    a("v_lshrrev_b32 v3, 4, v0")
    a("v_mul_u32_u24 v1, 1280, v1")
    a("v_lshlrev_b32 v2, 4, v0")
    a("s_mul_i32 s3, s25, 20480")
    a("s_waitcnt lgkmcnt(0)")
    a("s_cmp_ge_u32 s24, 2")
    a("s_cbranch_scc1 K0_CC")
    a("v_lshl_add_u32 v1, v3, 4, v1")
    a("s_cmp_eq_u32 s24, 1")
    a("s_cselect_b32 s16, s18, s16")
    a("s_cselect_b32 s17, s19, s17")
    srd(a, 8, 16, 0, SZ_SQ)
    srd(a, 12, 6, WS_BRE, 2 * SZ_SQ)
    a("s_mul_i32 s4, s24, %d" % SZ_SQ)
    a("s_add_u32 s4, s4, s3")
    for j in range(5):
        a("buffer_load_dwordx4 %s, v1, s[8:11], s3 offen offset:%d" % (v(4 + 4 * j, 4), 256 * j))
    a("s_waitcnt vmcnt(0)")
    for j in range(5):
        a("s_add_u32 s5, s4, %d" % (4096 * j))
        a("buffer_store_dwordx4 %s, v2, s[12:15], s5 offen" % v(4 + 4 * j, 4))
    a("s_endpgm")
    a.lab("K0_CC")
    a("v_lshl_add_u32 v1, v3, 3, v1")
    srd(a, 8, 20, 0, SZ_SQ)
    srd(a, 28, 22, 0, SZ_SQ)
    srd(a, 12, 6, WS_CRE, 2 * SZ_SQ)
    a("s_sub_u32 s24, s24, 2")
    a("s_mul_i32 s4, s24, 640")
    a("s_add_u32 s3, s3, s4")
    a("s_mul_i32 s4, s25, 40960")
    a("s_mul_i32 s5, s24, 20480")
    a("s_add_u32 s4, s4, s5")
    for j in range(5):
        a("buffer_load_dwordx2 %s, v1, s[8:11], s3 offen offset:%d" % (v(4 + 4 * j, 2), 128 * j))
        a("buffer_load_dwordx2 %s, v1, s[28:31], s3 offen offset:%d" % (v(6 + 4 * j, 2), 128 * j))
    a("s_mov_b32 s26, 0x05040100")
    a("s_mov_b32 s27, 0x07060302")
    a("s_mov_b32 s32, 0x80008000")
    a("s_waitcnt vmcnt(0)")
    for j in range(5):
        b = 4 + 4 * j
        a("v_xor_b32 v%d, s32, v%d" % (b + 2, b + 2))
        a("v_xor_b32 v%d, s32, v%d" % (b + 3, b + 3))
        a("v_perm_b32 v%d, v%d, v%d, s26" % (24 + 4 * j, b + 2, b))
        a("v_perm_b32 v%d, v%d, v%d, s27" % (25 + 4 * j, b + 2, b))
        a("v_perm_b32 v%d, v%d, v%d, s26" % (26 + 4 * j, b + 3, b + 1))
        a("v_perm_b32 v%d, v%d, v%d, s27" % (27 + 4 * j, b + 3, b + 1))
        a("s_add_u32 s5, s4, %d" % (4096 * j))
        a("buffer_store_dwordx4 %s, v2, s[12:15], s5 offen" % v(24 + 4 * j, 4))
    a("s_endpgm")
    a.lab("K0_NOTCP")
    a("s_cmp_ge_u32 s2, %d" % K0_T2)
    a("s_cbranch_scc1 K0_NOTTR")
    a("s_cmp_ge_u32 s2, %d" % K0_T1)
    a("s_cbranch_scc1 K0_TR2")
    a("s_load_dwordx2 s[4:5], s[0:1], %d" % KA["w1"])
    a("s_sub_u32 s3, s2, %d" % K0_CP)
    a("s_mul_hi_u32 s18, s3, 0x%x" % ((2**32 + 23) // 24))
    a("s_mul_i32 s19, s18, 24")
    a("s_sub_u32 s19, s3, s19")
    a("s_mov_b32 s16, 3072")
    a("s_mov_b32 s17, 20480")
    a("s_waitcnt lgkmcnt(0)")
    srd(a, 12, 6, WS_W1T, SZ_W)
    a("s_branch K0_TRGO")
    a.lab("K0_TR2")
    a("s_load_dwordx2 s[4:5], s[0:1], %d" % KA["w2"])
    a("s_sub_u32 s3, s2, %d" % K0_T1)
    a("s_mul_hi_u32 s18, s3, 0x%x" % ((2**32 + 9) // 10))
    a("s_mul_i32 s19, s18, 10")
    a("s_sub_u32 s19, s3, s19")
    a("s_mov_b32 s16, 1280")
    a("s_mov_b32 s17, 49152")
    a("s_waitcnt lgkmcnt(0)")
    srd(a, 12, 6, WS_W2T, SZ_W)
    a.lab("K0_TRGO")
    srd(a, 8, 4, 0, SZ_W)
    a("s_lshl_b32 s20, s18, 11")
    a("s_lshl_b32 s21, s19, 2")
    a("s_mul_i32 s21, s21, s17")
    a("s_add_u32 s20, s20, s21")
    a("s_lshl_b32 s18, s18, 6")
    a("s_lshl_b32 s19, s19, 6")
    a("v_lshrrev_b32 v1, 3, v0")
    a("v_and_b32 v2, 7, v0")
    a("v_add_u32 v3, s18, v1")
    a("v_mul_lo_u32 v3, v3, s16")
    a("v_lshlrev_b32 v4, 4, v2")
    a("v_add_u32 v3, v3, v4")
    a("s_lshl_b32 s3, s19, 1")
    a("v_add_u32 v3, s3, v3")
    a("s_lshl_b32 s3, s16, 5")
    a("buffer_load_dwordx4 v[8:11], v3, s[8:11], 0 offen")
    a("buffer_load_dwordx4 v[12:15], v3, s[8:11], s3 offen")
    a("v_lshlrev_b32 v5, 7, v1")
    a("v_add_u32 v5, v5, v4")
    a("s_waitcnt vmcnt(0)")
    a("ds_write_b128 v5, v[8:11]")
    a("ds_write_b128 v5, v[12:15] offset:4096")
    a("v_and_b32 v1, 15, v0")
    a("v_lshrrev_b32 v2, 4, v0")
    a("v_and_b32 v2, 7, v2")
    a("v_lshrrev_b32 v6, 7, v0")
    a("v_lshlrev_b32 v5, 10, v2")
    a("v_lshl_add_u32 v5, v1, 1, v5")
    a("v_lshl_add_u32 v5, v6, 5, v5")
    a("v_mul_lo_u32 v3, v6, s17")
    a("v_lshl_add_u32 v3, v2, 8, v3")
    a("v_lshl_add_u32 v3, v1, 4, v3")
    a("s_lshl_b32 s21, s17, 1")
    a("s_add_u32 s21, s21, s20")
    a("s_waitcnt lgkmcnt(0)")
    a("s_barrier")
    for h in range(2):
        for j in range(8):
            a("ds_read_u16 v%d, v5 offset:%d" % (8 + 8 * h + j, 128 * j + 64 * h))
    a("s_waitcnt lgkmcnt(0)")
    for j in range(8):
        a("v_lshl_or_b32 v%d, v%d, 16, v%d" % (24 + j, 9 + 2 * j, 8 + 2 * j))
    a("buffer_store_dwordx4 v[24:27], v3, s[12:15], s20 offen")
    a("buffer_store_dwordx4 v[28:31], v3, s[12:15], s21 offen")
    a("s_endpgm")
    a.lab("K0_NOTTR")
    a("s_cmp_ge_u32 s2, %d" % K0_C)
    a("s_cbranch_scc1 K0_ZERO")
    a("s_load_dwordx4 s[16:19], s[0:1], %d" % KA["lre"])
    a("s_load_dwordx2 s[4:5], s[0:1], %d" % KA["ldt"])
    a("s_sub_u32 s3, s2, %d" % K0_T2)
    a("s_lshl_b32 s3, s3, 8")
    a("v_add_u32 v1, s3, v0")
    a("v_lshlrev_b32 v2, 1, v1")
    a("s_waitcnt lgkmcnt(0)")
    srd(a, 8, 16, 0, 1280)
    srd(a, 12, 18, 0, 1280)
    srd(a, 24, 4, 0, 1280)
    srd(a, 36, 6, WS_CONST, SZ_CONST + SZ_PW)
    a("buffer_load_ushort v3, v2, s[8:11], 0 offen")
    a("buffer_load_ushort v4, v2, s[12:15], 0 offen")
    a("buffer_load_ushort v5, v2, s[24:27], 0 offen")
    L2E = 1.4426950408889634
    hi = struct.unpack("<f", struct.pack("<f", L2E))[0]
    a("s_mov_b32 s30, %s" % fhex(hi))
    a("s_mov_b32 s31, %s" % fhex(L2E - hi))
    a("s_mov_b32 s32, %s" % fhex(0.6931471805599453))
    I2P = 0.15915494309189535
    hi2 = struct.unpack("<f", struct.pack("<f", I2P))[0]
    a("s_mov_b32 s33, %s" % fhex(hi2))
    a("s_mov_b32 s34, %s" % fhex(I2P - hi2))
    a("s_waitcnt vmcnt(0)")
    a("v_lshlrev_b32 v3, 16, v3")
    a("v_lshlrev_b32 v4, 16, v4")
    a("v_lshlrev_b32 v5, 16, v5")
    exp_acc(a, 6, 5, 7, 8)
    bf16r(a, 6, 6)
    a("v_mul_f32 v7, v6, v3")
    a("v_mul_f32 v8, v6, v4")
    exp_acc(a, 9, 7, 10, 11)
    a("v_mul_f32 v10, s33, v8")
    a("v_fma_f32 v11, v8, s33, -v10")
    a("v_fma_f32 v11, v8, s34, v11")
    a("v_fract_f32 v10, v10")
    a("v_add_f32 v10, v10, v11")
    a("v_cos_f32 v12, v10")
    a("v_sin_f32 v13, v10")
    a("s_nop 0")
    a("v_mul_f32 v18, v9, v12")
    a("v_mul_f32 v19, v9, v13")
    a("v_add_f32 v10, -1.0, v18")
    a("v_mul_f32 v11, v3, v3")
    a("v_fma_f32 v11, v4, v4, v11")
    a("v_rcp_f32 v12, v11")
    a("v_mul_f32 v13, v10, v3")
    a("v_fma_f32 v13, v19, v4, v13")
    a("v_mul_f32 v14, v19, v3")
    a("v_fma_f32 v14, -v10, v4, v14")
    div_refine(a, 16, 13, 11, 12, 15)
    div_refine(a, 17, 14, 11, 12, 15)
    cmul(a, 20, 21, 18, 19, 18, 19)
    cmul(a, 22, 23, 20, 21, 18, 19)
    cmul(a, 24, 25, 20, 21, 20, 21)
    cmul(a, 28, 29, 24, 25, 24, 25)
    cmul(a, 26, 27, 28, 29, 28, 29)
    cmul(a, 28, 29, 26, 27, 26, 27)
    cmul(a, 30, 31, 28, 29, 28, 29)
    cmul(a, 26, 27, 30, 31, 30, 31)
    a("v_lshlrev_b32 v2, 6, v1")
    a("v_cmp_gt_u32 vcc, 640, v1")
    a("s_and_saveexec_b64 s[40:41], vcc")
    a("s_cbranch_execz K0_END")
    for d, sgc in zip(range(40, 52), [16, 17, 18, 20, 22, 24, 19, 21, 23, 25, 26, 27]):
        a("v_mov_b32 v%d, v%d" % (d, sgc))
    a("buffer_store_dwordx4 v[40:43], v2, s[36:39], 0 offen")
    a("buffer_store_dwordx4 v[44:47], v2, s[36:39], 0 offen offset:16")
    a("buffer_store_dwordx4 v[48:51], v2, s[36:39], 0 offen offset:32")
    a("v_lshlrev_b32 v2, 8, v1")
    a("v_add_u32 v2, %d, v2" % SZ_CONST)
    a("v_mov_b32 v32, 1.0")
    a("v_mov_b32 v33, 0")
    a("v_mov_b32 v34, v24")
    a("v_mov_b32 v35, v25")
    for jj in range(16):
        b = 32 + (jj % 2) * 4; nb = 32 + ((jj + 1) % 2) * 4
        a("buffer_store_dwordx4 %s, v2, s[36:39], 0 offen offset:%d" % (v(b, 4), 16 * jj))
        if jj < 15:
            cmul(a, nb, nb + 1, b + 2, b + 3, 24, 25)
            cmul(a, nb + 2, nb + 3, nb, nb + 1, 24, 25)
            a("s_nop 1")
    a("s_endpgm")
    a.lab("K0_ZERO")
    a("s_sub_u32 s3, s2, %d" % K0_C)
    a("s_lshl_b32 s3, s3, 8")
    a("v_add_u32 v1, s3, v0")
    a("v_lshlrev_b32 v1, 4, v1")
    a("v_mov_b32 v4, 0")
    a("v_mov_b32 v5, 0")
    a("v_mov_b32 v6, 0")
    a("v_mov_b32 v7, 0")
    a("s_waitcnt lgkmcnt(0)")
    srd(a, 8, 6, WS_AGG, SZ_AGG)
    a("buffer_store_dwordx4 v[4:7], v1, s[8:11], 0 offen")
    a.lab("K0_END")
    a("s_endpgm")

def desc(name, vg, sg=102, lds_static=0):
    acc = min(256, (vg + 3) // 4 * 4)
    return """.amdhsa_kernel %s
  .amdhsa_next_free_vgpr %d
  .amdhsa_next_free_sgpr %d
  .amdhsa_accum_offset %d
  .amdhsa_group_segment_fixed_size 0
  .amdhsa_kernarg_size 120
  .amdhsa_user_sgpr_count 2
  .amdhsa_user_sgpr_kernarg_segment_ptr 1
  .amdhsa_system_sgpr_workgroup_id_x 1
  .amdhsa_float_denorm_mode_32 3
.end_amdhsa_kernel
""" % (name, vg, sg, acc)


import os
STAMP = int(os.environ.get("STAMP", "0"))
WS_ST = 0x1500000
def stamp_init(a):
    if not STAMP: return
    srd(a, 60, 6, WS_ST, 0x100000)
    a("s_lshl_b32 s64, s2, 8")
    a("s_lshl_b32 s65, s28, 6")
    a("s_add_u32 s64, s64, s65")
def stamp(a, i):
    if not STAMP: return
    a("s_memtime s[66:67]")
    a("s_waitcnt lgkmcnt(0)")
    a("v_mov_b32 v255, s66")
    a("v_mov_b32 v254, 0")
    a("s_nop 0")
    a("buffer_store_dword v255, v254, s[60:63], s64 offen offset:%d" % (4 * i))
```

```python
from gen import *

K1_ST = 0
STG = 40960
NST = 3
K1MAP = int(os.environ.get("K1MAP", "1"))
EXP = int(os.environ.get("EXP", "0"))
K1_CB = NST * STG
K1_PW = K1_CB + 5120
K1_LDS = K1_PW + 20480
K1_T = K1_ST; K1_P = K1_T + 20480; K1_C = K1_P + 20480; K1_O = K1_C + 1024
ACC = 12; B0 = 108; B1 = 156; A0 = 204; A1 = 212

def pk(op, d, x, y, z=None, sx=None, sy=None, neg=None):
    n = 2 if z is None else 3
    lo = [0] * n; hi = [1] * n
    for i, sel in enumerate([sx, sy]):
        if sel == 'sw': lo[i] = 1; hi[i] = 0
        elif sel is not None: lo[i] = sel; hi[i] = sel
    t = "v_pk_%s_f32 %s, %s, %s" % (op, v(d, 2), v(x, 2), v(y, 2))
    if z is not None: t += ", " + v(z, 2)
    t += " op_sel:[%s] op_sel_hi:[%s]" % (",".join(map(str, lo)), ",".join(map(str, hi)))
    if neg: t += " neg_lo:[%s] neg_hi:[%s]" % (",".join(map(str, neg[0])), ",".join(map(str, neg[1])))
    return t

def interleave(a, mf, items, start=0, every=1):
    k = 0
    for n, m in enumerate(mf):
        a(m)
        if n >= start and (n - start) % every == 0 and k < len(items):
            a(items[k]); k += 1
    for it in items[k:]: a(it)

def k1_main(a, NT, ssm, tag):
    nd = NT // 2
    stepJ = 20480 if ssm else 40960
    per = 4 + nd
    def acc(rt, ct): return ACC + (rt * NT + ct) * 4
    def dma_items(stage_sreg):
        it = []
        for j in range(nd):
            it.append("s_add_u32 m0, s%d, s32\ns_add_u32 m0, m0, %d\ns_add_u32 s35, s31, %d\ns_add_u32 s35, s35, s53\nbuffer_load_dwordx4 v1, s[12:15], s35 offen lds" % (stage_sreg, 4 * j * 1024, j * stepJ))
        for rt in range(2):
            for ks in range(2):
                it.append("s_add_u32 m0, s%d, s54\ns_add_u32 m0, m0, %d\ns_add_u32 s35, s%d, %d\ns_add_u32 s35, s35, s53\nbuffer_load_dwordx4 v1, s[8:11], s35 offen lds" % (stage_sreg, (rt * 2 + ks) * 1024, 33 + rt, ks * 1024))
        return it
    def rd_items(vb, va, ks, bset, aset):
        it = []
        for rt in range(2):
            it.append("ds_read_b128 %s, v%d offset:%d" % (v(aset + 4 * rt, 4), va, (rt * 2 + ks) * 1024))
        for ct in range(NT):
            it.append("ds_read_b128 %s, v%d offset:%d" % (v(bset + 4 * ct, 4), vb, (ct * 2 + ks) * 1024))
        return it
    def mf_list(bset, aset):
        L = []
        for ct in range(NT):
            for rt in range(2):
                Areg = v(aset + 4 * rt, 4); Breg = v(bset + 4 * ct, 4); C = v(acc(rt, ct), 4)
                if ssm: L.append("v_mfma_f32_16x16x32_bf16 %s, %s, %s, %s" % (C, Areg, Breg, C))
                else:   L.append("v_mfma_f32_16x16x32_bf16 %s, %s, %s, %s" % (C, Breg, Areg, C))
        return L
    def set_addr():
        a("v_add_u32 v2, s50, v1")
        a("v_add_u32 v3, s50, v7")
        a("v_add_u32 v8, s51, v1")
        a("v_add_u32 v9, s51, v7")
    def advance():
        a("s_mov_b32 s50, s51")
        a("s_add_u32 s51, s51, %d" % STG)
        a("s_cmp_eq_u32 s51, %d" % (NST * STG))
        a("s_cselect_b32 s51, 0, s51")
        a("s_add_u32 s53, s53, 2048")
        set_addr()
    a("s_lshl_b32 s54, s28, 12")
    a("s_add_u32 s54, s54, 24576")
    a("v_add_u32 v7, s54, v1")
    a("s_mov_b32 s53, 0")
    for st in range(NST):
        a("s_mov_b32 s50, %d" % (st * STG))
        for x in dma_items(50): a(x)
        a("s_add_u32 s53, s53, 2048")
    a("s_mov_b32 s50, 0")
    a("s_mov_b32 s51, %d" % STG)
    set_addr()
    for r in range(2 * NT * 4): a("v_mov_b32 v%d, 0" % (ACC + r))
    a("s_waitcnt vmcnt(%d)" % (per * (NST - 1)))
    a("s_barrier")
    stamp(a, 1)
    for x in rd_items(2, 3, 0, B0, A0): a(x)
    a("s_mov_b32 s55, %d" % (10 - NST))
    a.lab("K1_LOOP" + tag)
    a("s_waitcnt lgkmcnt(0)")
    interleave(a, mf_list(B0, A0), rd_items(2, 3, 1, B1, A1))
    a("s_waitcnt vmcnt(%d) lgkmcnt(0)" % (per * (NST - 2)))
    a("s_barrier")
    interleave(a, mf_list(B1, A1), rd_items(8, 9, 0, B0, A0) + dma_items(50))
    advance()
    a("s_sub_u32 s55, s55, 1")
    a("s_cmp_lg_u32 s55, 0")
    a("s_cbranch_scc1 K1_LOOP" + tag)
    a("s_mov_b32 s55, %d" % (NST - 1))
    a.lab("K1_TAIL" + tag)
    a("s_waitcnt lgkmcnt(0)")
    interleave(a, mf_list(B0, A0), rd_items(2, 3, 1, B1, A1))
    a("s_waitcnt vmcnt(0) lgkmcnt(0)")
    a("s_barrier")
    interleave(a, mf_list(B1, A1), rd_items(8, 9, 0, B0, A0))
    advance()
    a("s_sub_u32 s55, s55, 1")
    a("s_cmp_lg_u32 s55, 0")
    a("s_cbranch_scc1 K1_TAIL" + tag)
    a("s_waitcnt lgkmcnt(0)")
    interleave(a, mf_list(B0, A0), rd_items(2, 3, 1, B1, A1))
    a("s_waitcnt lgkmcnt(0)")
    for m in mf_list(B1, A1): a(m)
    a("s_nop 15")
    stamp(a, 2)
    return acc

def gen_k1(a):
    a.lab("k1_kernel")
    a("s_cmp_ge_u32 s2, 256")
    a("s_cbranch_scc1 K1_END")
    a("s_load_dwordx2 s[6:7], s[0:1], %d" % KA["ws"])
    a("v_lshrrev_b32 v1, 6, v0")
    a("v_and_b32 v4, 63, v0")
    a("s_nop 0")
    a("v_readfirstlane_b32 s28, v1")
    a("s_and_b32 s3, s2, 7")
    a("s_lshr_b32 s4, s2, 3")
    if K1MAP == 0:
        a("s_lshl_b32 s29, s3, 1")
        a("s_lshr_b32 s5, s4, 4")
        a("s_add_u32 s29, s29, s5")
        a("s_and_b32 s30, s4, 15")
    else:
        a("s_and_b32 s29, s3, 1")
        a("s_lshl_b32 s29, s29, 3")
        a("s_and_b32 s5, s4, 7")
        a("s_add_u32 s29, s29, s5")
        a("s_lshr_b32 s5, s4, 3")
        a("s_and_b32 s30, s5, 1")
        a("s_lshr_b32 s5, s5, 1")
        a("s_lshl_b32 s5, s5, 3")
        a("s_add_u32 s30, s30, s5")
        a("s_and_b32 s5, s3, 6")
        a("s_add_u32 s30, s30, s5")
    a("v_and_b32 v5, 15, v4")
    a("v_lshrrev_b32 v6, 4, v4")
    a("v_lshlrev_b32 v1, 4, v4")
    a("s_lshl_b32 s32, s28, 10")
    a("s_lshl_b32 s33, s29, 3")
    a("s_lshl_b32 s3, s28, 1")
    a("s_add_u32 s45, s33, s3")
    a("s_mul_i32 s33, s45, 20480")
    a("s_add_u32 s34, s33, 20480")
    a("s_waitcnt lgkmcnt(0)")
    srd(a, 8, 6, WS_XN, SZ_XN)
    stamp_init(a); stamp(a, 0)
    a("s_cmp_ge_u32 s30, 8")
    a("s_cbranch_scc1 K1_FFN")
    srd(a, 12, 6, WS_BRE, 2 * SZ_SQ)
    srd(a, 16, 6, WS_CONST, SZ_CONST + SZ_PW)
    srd(a, 20, 6, WS_AGG, SZ_AGG)
    srd(a, 24, 6, WS_H, SZ_H)
    a("s_mul_i32 s31, s30, %d" % (5 * 20480))
    a("s_and_b32 s3, s28, 1")
    a("s_lshl_b32 s3, s3, 10")
    a("s_add_u32 s31, s31, s3")
    a("s_lshr_b32 s3, s28, 1")
    a("s_mul_i32 s3, s3, %d" % SZ_SQ)
    a("s_add_u32 s31, s31, s3")
    a("s_mul_i32 s3, s30, 5120")
    a("s_add_u32 s35, s3, s32")
    a("s_add_u32 m0, s32, %d" % K1_CB)
    a("s_add_u32 s3, s3, 4096")
    a("buffer_load_dwordx4 v1, s[16:19], s35 offen lds")
    a("s_mov_b32 m0, %d" % (K1_CB + 4096))
    a("s_nop 0")
    a("buffer_load_dwordx4 v1, s[16:19], s3 offen lds")
    a("s_mul_i32 s3, s30, 20480")
    a("s_add_u32 s3, s3, %d" % SZ_CONST)
    a("s_add_u32 s3, s3, s32")
    for k in range(5):
        a("s_add_u32 m0, s32, %d" % (K1_PW + 4096 * k))
        a("s_add_u32 s35, s3, %d" % (4096 * k))
        a("buffer_load_dwordx4 v1, s[16:19], s35 offen lds")
    acc = k1_main(a, 10, True, "S")
    a("s_barrier")
    CU = lambda u: 108 + 12 * u
    a("v_lshlrev_b32 v7, 6, v5")
    a("v_add_u32 v7, %d, v7" % K1_CB)
    for u in range(5):
        for k in range(3):
            a("ds_read_b128 %s, v7 offset:%d" % (v(CU(u) + 4 * k, 4), u * 1024 + 16 * k))
    a("s_lshl_b32 s3, s28, 3")
    a("v_add_u32 v8, s3, v6")
    a("v_mul_u32_u24 v8, 640, v8")
    a("v_lshl_add_u32 v8, v5, 3, v8")
    a("s_waitcnt lgkmcnt(0)")
    UR = [(u, rt) for u in range(5) for rt in range(2)]
    for u in range(5):
        a("v_sub_f32 v%d, 0, v%d" % (CU(u) + 10, CU(u) + 6))
    for r in range(1, 4):
        for (u, rt) in UR:
            R = acc(rt, 2 * u) + r
            a("v_fmac_f32 v%d, v%d, v%d" % (R, CU(u) + 2, R - 1))
        for (u, rt) in UR:
            I = acc(rt, 2 * u + 1) + r
            a("v_fmac_f32 v%d, v%d, v%d" % (I, CU(u) + 2, I - 1))
        for (u, rt) in UR:
            R = acc(rt, 2 * u) + r; I = acc(rt, 2 * u + 1) + r
            a("v_fmac_f32 v%d, v%d, v%d" % (R, CU(u) + 10, I - 1))
        for (u, rt) in UR:
            R = acc(rt, 2 * u) + r; I = acc(rt, 2 * u + 1) + r
            a("v_fmac_f32 v%d, v%d, v%d" % (I, CU(u) + 6, R - 1))
    a("v_add_u32 v9, %d, v8" % (K1_T + 2560))
    for (u, rt) in UR:
        a("ds_write2_b32 v%d, v%d, v%d offset0:%d offset1:%d" % (8 + rt, acc(rt, 2 * u) + 3, acc(rt, 2 * u + 1) + 3, u * 32, u * 32 + 1))
    a("s_waitcnt lgkmcnt(0)")
    a("s_barrier")
    stamp(a, 6)
    TV = 168; S0 = 232; S1 = 234; L4 = 236; PUB = 240; VA = 244; VG = 245; BAD = 246; TMP = 247
    a("s_mov_b64 exec, 0xfffff")
    a("s_mul_i32 s3, s28, 20")
    a("v_add_u32 v%d, s3, v4" % TMP)
    a("v_lshlrev_b32 v%d, 3, v%d" % (VA, TMP))
    a("v_lshlrev_b32 v%d, 4, v%d" % (VG, TMP))
    a("v_lshlrev_b32 v%d, 6, v%d" % (TMP, TMP))
    a("v_add_u32 v%d, %d, v%d" % (TMP, K1_CB, TMP))
    a("ds_read_b32 v%d, v%d offset:20" % (L4, TMP))
    a("ds_read_b32 v%d, v%d offset:36" % (L4 + 1, TMP))
    a("ds_read_b64 %s, v%d offset:40" % (v(L4 + 2, 2), TMP))
    for g in range(32):
        a("ds_read_b64 %s, v%d offset:%d" % (v(TV + 2 * g, 2), VA, K1_T + g * 640))
    def horner(src, dst, mr, mi, tr, ti):
        a("v_fma_f32 v%d, v%d, v%d, v%d" % (dst, mr, src, tr))
        a("v_fma_f32 v%d, v%d, v%d, v%d" % (dst + 1, mr, src + 1, ti))
        a("v_fma_f32 v%d, -v%d, v%d, v%d" % (dst, mi, src + 1, dst))
        a("v_fma_f32 v%d, v%d, v%d, v%d" % (dst + 1, mi, src, dst + 1))
    def hornerpk(src, dst, m, t):
        a(pk("fma", dst, m, src, t, sx=0))
        a(pk("fma", dst, m, src, dst, sx=1, sy='sw', neg=([1, 0, 0], [0, 0, 0])))
    a("v_mov_b32 v%d, 0" % S1)
    a("v_mov_b32 v%d, 0" % (S1 + 1))
    a("ds_write_b64 v%d, %s offset:%d" % (VA, v(S1, 2), K1_P))
    a("v_mov_b32 v%d, 1" % (PUB + 1))
    a("v_mov_b32 v%d, 1" % (PUB + 3))
    a("s_lshl_b32 s42, s30, 4")
    a("s_mul_i32 s42, s42, 1280")
    a("s_mul_i32 s3, s29, 1280")
    a("s_add_u32 s3, s3, s42")
    a("s_waitcnt lgkmcnt(1)")
    cur = TV
    for g in range(1, 32):
        a("ds_write_b64 v%d, %s offset:%d" % (VA, v(cur, 2), K1_P + g * 640))
        nxt = S1 if cur != S1 else S0
        hornerpk(cur, nxt, L4, TV + 2 * g)
        cur = nxt
    a("v_mov_b32 v%d, v%d" % (PUB, cur))
    a("v_mov_b32 v%d, v%d" % (PUB + 2, cur + 1))
    a("buffer_store_dwordx4 %s, v%d, s[20:23], s3 offen sc0 sc1" % (v(PUB, 4), VG))
    stamp(a, 3)
    def poll_loads(lab):
        for c in range(15):
            a("s_cmp_le_u32 s29, %d" % c)
            a("s_cbranch_scc1 %s" % lab)
            a("s_add_u32 s35, s42, %d" % (c * 1280))
            a("buffer_load_dwordx4 %s, v%d, s[20:23], s35 offen sc0 sc1" % (v(TV + 4 * c, 4), VG))
        a.lab(lab)
    poll_loads("K1_LD0")
    a("s_mov_b64 exec, -1")
    for half in range(4):
        H = UR[5 * (half % 2): 5 * (half % 2) + 5]
        p = 2 * (half // 2)
        T3 = [214, 216, 218, 220, 222]
        T3 = [204, 206, 208, 210, 248]
        T3 = [248, 250, 252, 10, 2]
        for n, (u, rt) in enumerate(H):
            a(pk("mul", T3[n], CU(u), acc(rt, 2 * u + 1) + p, sx=1))
        for n, (u, rt) in enumerate(H):
            I = acc(rt, 2 * u + 1) + p
            a(pk("mul", I, CU(u), I, sx=0))
        for n, (u, rt) in enumerate(H):
            I = acc(rt, 2 * u + 1) + p; R = acc(rt, 2 * u) + p
            a(pk("fma", I, CU(u), R, I, sx=1))
        for n, (u, rt) in enumerate(H):
            R = acc(rt, 2 * u) + p
            a(pk("fma", R, CU(u), R, T3[n], sx=0, neg=([0, 0, 1], [0, 0, 1])))
    a("s_mov_b64 exec, 0xfffff")
    a("s_mov_b32 s43, 0")
    a("s_branch K1_LOADED")
    a.lab("K1_POLL")
    poll_loads("K1_LOADED")
    a("s_waitcnt vmcnt(0)")
    a("v_mov_b32 v%d, 0" % BAD)
    for c in range(15):
        a("s_cmp_le_u32 s29, %d" % c)
        a("s_cbranch_scc1 K1_CHK")
        a("v_xor_b32 v%d, 1, v%d" % (TMP, TV + 4 * c + 1))
        a("v_or_b32 v%d, v%d, v%d" % (BAD, BAD, TMP))
        a("v_xor_b32 v%d, 1, v%d" % (TMP, TV + 4 * c + 3))
        a("v_or_b32 v%d, v%d, v%d" % (BAD, BAD, TMP))
    a.lab("K1_CHK")
    a("v_cmp_ne_u32 vcc, 0, v%d" % BAD)
    a("s_add_u32 s43, s43, 1")
    a("s_cmp_ge_u32 s43, 0x40000")
    a("s_cbranch_scc1 K1_GOT")
    a("s_nop 4")
    a("s_cbranch_vccnz K1_POLL")
    a.lab("K1_GOT")
    stamp(a, 4)
    a("v_mov_b32 v%d, 0" % S0)
    a("v_mov_b32 v%d, 0" % (S0 + 1))
    for c in range(15):
        a("s_cmp_le_u32 s29, %d" % c)
        a("s_cbranch_scc1 K1_CARRY")
        horner(S0, S1, L4 + 2, L4 + 3, TV + 4 * c, TV + 4 * c + 2)
        a("v_mov_b32 v%d, v%d" % (S0, S1))
        a("v_mov_b32 v%d, v%d" % (S0 + 1, S1 + 1))
    a.lab("K1_CARRY")
    a("ds_write_b64 v%d, %s offset:%d" % (VA, v(S0, 2), K1_C))
    a("s_mov_b64 exec, -1")
    PV = 168; WV = 188; CV = 212; XV = 224
    a("s_lshl_b32 s3, s28, 6")
    a("s_add_u32 s3, s3, %d" % K1_PW)
    a("v_lshlrev_b32 v9, 8, v5")
    a("v_lshl_add_u32 v9, v6, 3, v9")
    a("v_add_u32 v9, s3, v9")
    for n, (u, rt) in enumerate(UR):
        a("ds_read_b64 %s, v9 offset:%d" % (v(WV + 2 * n, 2), u * 4096 + rt * 32))
    a("v_lshlrev_b32 v10, 3, v5")
    a("v_lshlrev_b32 v7, 6, v6")
    a("v_lshrrev_b32 v9, 2, v5")
    a("v_lshl_add_u32 v7, v9, 8, v7")
    a("v_and_b32 v9, 3, v5")
    a("v_lshl_add_u32 v7, v9, 2, v7")
    a("s_mul_i32 s44, s28, 10240")
    a("s_add_u32 s44, s44, %d" % K1_O)
    a("v_add_u32 v7, s44, v7")
    a("v_add_u32 v11, s44, v1")
    a("s_mul_i32 s36, s45, 40960")
    a("s_mul_i32 s4, s30, 5120")
    a("s_add_u32 s36, s36, s4")
    a("s_add_u32 s37, s36, 40960")
    a("s_add_u32 s38, s36, 4096")
    a("s_add_u32 s39, s37, 4096")
    a("s_waitcnt lgkmcnt(0)")
    a("s_barrier")
    stamp(a, 7)
    for n, (u, rt) in enumerate(UR):
        a("ds_read_b64 %s, v8 offset:%d" % (v(PV + 2 * n, 2), K1_P + rt * 2560 + u * 128))
    for u in range(5):
        a("ds_read_b64 %s, v10 offset:%d" % (v(CV + 2 * u, 2), K1_C + u * 128))
    a("s_waitcnt lgkmcnt(0)")
    for n, (u, rt) in enumerate(UR):
        a(pk("fma", PV + 2 * n, WV + 2 * n, CV + 2 * u, PV + 2 * n, sx=0))
    for n, (u, rt) in enumerate(UR):
        a(pk("fma", PV + 2 * n, WV + 2 * n, CV + 2 * u, PV + 2 * n, sx=1, sy='sw', neg=([1, 0, 0], [0, 0, 0])))
    for n, (u, rt) in enumerate(UR):
        a(pk("mul", WV + 2 * n, CU(u), PV + 2 * n, sx=0))
    for n, (u, rt) in enumerate(UR):
        a(pk("fma", WV + 2 * n, CU(u), PV + 2 * n, WV + 2 * n, sx=1, sy='sw', neg=([1, 0, 0], [0, 0, 0])))
    for p in (0, 2):
        for n, (u, rt) in enumerate(UR):
            R = acc(rt, 2 * u) + p
            a(pk("fma", R, CU(u) + 2 + p, WV + 2 * n, R, sy=0))
        for n, (u, rt) in enumerate(UR):
            I = acc(rt, 2 * u + 1) + p
            a(pk("fma", I, CU(u) + 2 + p, WV + 2 * n, I, sy=1))
        for n, (u, rt) in enumerate(UR):
            R = acc(rt, 2 * u) + p
            a(pk("fma", R, CU(u) + 6 + p, WV + 2 * n, R, sy=1, neg=([1, 0, 0], [1, 0, 0])))
        for n, (u, rt) in enumerate(UR):
            I = acc(rt, 2 * u + 1) + p
            a(pk("fma", I, CU(u) + 6 + p, WV + 2 * n, I, sy=0))
    for r in range(4):
        for n, (u, rt) in enumerate(UR):
            R = acc(rt, 2 * u) + r; I = acc(rt, 2 * u + 1) + r
            a("v_cvt_pk_bf16_f32 v%d, v%d, v%d" % (R, R, I))
        for n, (u, rt) in enumerate(UR):
            R = acc(rt, 2 * u) + r
            a("ds_write_b32 v7, v%d offset:%d" % (R, rt * 5120 + u * 1024 + r * 16))
    a("s_waitcnt lgkmcnt(0)")
    for j in range(10):
        a("ds_read_b128 %s, v11 offset:%d" % (v(168 + 4 * j, 4), 1024 * j))
    for j in range(10):
        a("s_waitcnt lgkmcnt(%d)" % (9 - j))
        a("buffer_store_dwordx4 %s, v1, s[24:27], s%d offen offset:%d" % (v(168 + 4 * j, 4), 36 + (j // 5) + 2 * ((j % 5) // 4), ((j % 5) % 4) * 1024) + " sc1")
    if STAMP:
        stamp(a, 8)
        a("s_waitcnt vmcnt(0)")
        stamp(a, 5)
    a("s_endpgm")
    a.lab("K1_FFN")
    srd(a, 12, 6, WS_W1T, SZ_W)
    srd(a, 24, 6, WS_H1, SZ_H1)
    a("s_sub_u32 s30, s30, 8")
    a("s_mul_i32 s31, s30, 12")
    a("s_lshr_b32 s3, s28, 1")
    a("s_add_u32 s31, s31, s3")
    a("s_mul_i32 s31, s31, 20480")
    a("s_and_b32 s3, s28, 1")
    a("s_lshl_b32 s3, s3, 10")
    a("s_add_u32 s31, s31, s3")
    acc = k1_main(a, 12, False, "F")
    a("v_lshlrev_b32 v7, 4, v5")
    a("v_and_b32 v9, 1, v6")
    a("v_lshl_add_u32 v7, v9, 3, v7")
    a("v_lshrrev_b32 v9, 1, v6")
    a("v_lshl_add_u32 v7, v9, 8, v7")
    a("s_mul_i32 s36, s45, 49152")
    a("s_mul_i32 s4, s30, 6144")
    a("s_add_u32 s36, s36, s4")
    a("s_add_u32 s37, s36, 4096")
    a("s_add_u32 s38, s36, 49152")
    a("s_add_u32 s39, s36, %d" % (49152 + 4096))
    a("s_mov_b32 s5, %s" % fhex(-1.4426950408889634))
    T = 108
    for rt in range(2):
        for ct in range(12):
            C = acc(rt, ct)
            t = T + ((rt * 12 + ct) % 4) * 12
            a("v_cvt_pk_bf16_f32 v%d, v%d, v%d" % (t, C, C + 1))
            a("v_cvt_pk_bf16_f32 v%d, v%d, v%d" % (t + 1, C + 2, C + 3))
            a("v_lshlrev_b32 v%d, 16, v%d" % (C, t))
            a("v_and_b32 v%d, 0xffff0000, v%d" % (C + 1, t))
            a("v_lshlrev_b32 v%d, 16, v%d" % (C + 2, t + 1))
            a("v_and_b32 v%d, 0xffff0000, v%d" % (C + 3, t + 1))
            for r in range(4): a("v_mul_f32 v%d, s5, v%d" % (t + 2 + r, C + r))
            for r in range(4): a("v_exp_f32 v%d, v%d" % (t + 2 + r, t + 2 + r))
            for r in range(4): a("v_add_f32 v%d, 1.0, v%d" % (t + 2 + r, t + 2 + r))
            for r in range(4): a("v_rcp_f32 v%d, v%d" % (t + 2 + r, t + 2 + r))
            for r in range(4): a("v_mul_f32 v%d, v%d, v%d" % (t + 2 + r, C + r, t + 2 + r))
            a("v_cvt_pk_bf16_f32 v%d, v%d, v%d" % (t + 6, t + 2, t + 3))
            a("v_cvt_pk_bf16_f32 v%d, v%d, v%d" % (t + 7, t + 4, t + 5))
            a("buffer_store_dwordx2 %s, v7, s[24:27], s%d offen offset:%d" % (v(t + 6, 2), 36 + 2 * rt + (ct // 8), (ct % 8) * 512) + " sc1")
    a("s_waitcnt vmcnt(0)")
    stamp(a, 5)
    a.lab("K1_END")
    a("s_endpgm")

K3_PITCH = 84 * 4
K3_PART = 64 * K3_PITCH
K3_LDS = 4 * K3_PART
K3_D = 4
def k3_main(a):
    RING = 92
    def acc(i, j): return 12 + (i * 5 + j) * 4
    def loads(s):
        base = RING + s * 36
        for i in range(4):
            a("buffer_load_dwordx4 %s, v1, s[8:11], s%d offen offset:%d" % (v(base + 4 * i, 4), 36 + i, s * 1024))
        for j in range(5):
            a("buffer_load_dwordx4 %s, v1, s[12:15], s%d offen offset:%d" % (v(base + 16 + 4 * j, 4), 40 + j, s * 1024))
    def mf(s):
        base = RING + s * 36
        for i in range(4):
            for j in range(5):
                C = v(acc(i, j), 4)
                a("v_mfma_f32_16x16x32_bf16 %s, %s, %s, %s" % (C, v(base + 16 + 4 * j, 4), v(base + 4 * i, 4), C))
    for s in range(4): loads(s)
    a("v_add_u32 v1, 4096, v1")
    for r in range(80): a("v_mov_b32 v%d, 0" % (12 + r))
    a.lab("K3_LOOP")
    for s in range(4):
        a("s_waitcnt vmcnt(27)")
        mf(s)
        loads(s)
    a("v_add_u32 v1, 4096, v1")
    a("s_sub_u32 s47, s47, 1")
    a("s_cmp_lg_u32 s47, 0")
    a("s_cbranch_scc1 K3_LOOP")
    for s in range(4):
        a("s_waitcnt vmcnt(%d)" % (9 * (3 - s)))
        mf(s)

def gen_k3(a):
    a.lab("k3_kernel")
    a("s_cmp_ge_u32 s2, 256")
    a("s_cbranch_scc1 K3_END")
    a("s_load_dwordx2 s[6:7], s[0:1], %d" % KA["ws"])
    a("s_load_dwordx2 s[52:53], s[0:1], %d" % KA["x"])
    a("s_load_dwordx2 s[54:55], s[0:1], %d" % KA["dsk"])
    a("s_load_dwordx2 s[56:57], s[0:1], %d" % KA["out"])
    a("v_lshrrev_b32 v1, 6, v0")
    a("v_and_b32 v4, 63, v0")
    a("s_nop 0")
    a("v_readfirstlane_b32 s28, v1")
    a("s_and_b32 s3, s2, 7")
    a("s_lshr_b32 s4, s2, 3")
    a("s_lshl_b32 s29, s3, 2")
    a("s_lshr_b32 s5, s4, 3")
    a("s_add_u32 s29, s29, s5")
    a("s_and_b32 s30, s4, 7")
    a("v_and_b32 v5, 15, v4")
    a("v_lshrrev_b32 v6, 4, v4")
    a("v_lshlrev_b32 v1, 4, v4")
    a("s_waitcnt lgkmcnt(0)")
    stamp_init(a); stamp(a, 0)
    if STAMP:
        a("s_memrealtime s[68:69]")
        a("s_waitcnt lgkmcnt(0)")
        a("v_mov_b32 v255, s68")
        a("buffer_store_dword v255, v254, s[60:63], s64 offen offset:16")
    a("s_cmp_ge_u32 s28, 2")
    a("s_cbranch_scc1 K3_FFNW")
    srd(a, 8, 6, WS_H, SZ_H)
    srd(a, 12, 6, WS_CRE, 2 * SZ_SQ)
    a("s_mul_i32 s36, s29, %d" % (4 * 40960))
    a("s_mul_i32 s3, s28, 20480")
    a("s_add_u32 s36, s36, s3")
    for i in range(1, 4): a("s_add_u32 s%d, s36, %d" % (36 + i, i * 40960))
    a("s_mul_i32 s40, s30, %d" % (5 * 40960))
    a("s_add_u32 s40, s40, s3")
    for j in range(1, 5): a("s_add_u32 s%d, s40, %d" % (40 + j, j * 40960))
    a("s_mov_b32 s47, 4")
    a("s_branch K3_MAIN")
    a.lab("K3_FFNW")
    srd(a, 8, 6, WS_H1, SZ_H1)
    srd(a, 12, 6, WS_W2T, SZ_W)
    a("s_mul_i32 s36, s29, %d" % (4 * 49152))
    a("s_sub_u32 s3, s28, 2")
    a("s_mul_i32 s3, s3, 24576")
    a("s_add_u32 s36, s36, s3")
    for i in range(1, 4): a("s_add_u32 s%d, s36, %d" % (36 + i, i * 49152))
    a("s_mul_i32 s40, s30, %d" % (5 * 49152))
    a("s_add_u32 s40, s40, s3")
    for j in range(1, 5): a("s_add_u32 s%d, s40, %d" % (40 + j, j * 49152))
    a("s_mov_b32 s47, 5")
    a.lab("K3_MAIN")
    k3_main(a)
    a.lab("K3_EPI")
    stamp(a, 1)
    srd(a, 16, 52, 0, SZ_XN)
    srd(a, 20, 6, WS_XN, SZ_XN)
    srd(a, 24, 54, 0, 1280)
    srd(a, 32, 56, 0, 2048 * 640 * 4)
    a("s_mul_i32 s3, s29, %d" % (64 * 1280))
    a("s_mul_i32 s4, s30, 160")
    a("s_add_u32 s3, s3, s4")
    a("s_lshl_b32 s5, s3, 1")
    a("s_mul_i32 s46, s29, %d" % (4 * 20480))
    a("s_mul_i32 s48, s30, 2560")
    a("s_add_u32 s46, s46, s48")
    E = 92
    for j in range(5):
        b = E + 8 * j
        a("v_add_u32 v7, %d, v0" % (256 * j))
        a("v_mul_u32_u24 v8, 0xcccd, v7")
        a("v_lshrrev_b32 v8, 20, v8")
        a("v_mul_u32_u24 v9, 20, v8")
        a("v_sub_u32 v9, v7, v9")
        a("v_mul_u32_u24 v%d, 1280, v8" % b)
        a("v_lshl_add_u32 v%d, v9, 3, v%d" % (b, b))
        a("v_mul_u32_u24 v%d, %d, v8" % (b + 1, K3_PITCH))
        a("v_lshl_add_u32 v%d, v9, 4, v%d" % (b + 1, b + 1))
        a("v_lshlrev_b32 v9, 3, v9")
        a("buffer_load_dwordx2 %s, v%d, s[16:19], s3 offen" % (v(b + 2, 2), b))
        a("v_lshrrev_b32 v10, 4, v8")
        a("v_mul_u32_u24 v10, 20480, v10")
        a("v_and_b32 v11, 15, v8")
        a("v_lshl_add_u32 v10, v11, 4, v10")
        a("v_lshrrev_b32 v11, 4, v9")
        a("v_lshl_add_u32 v10, v11, 8, v10")
        a("v_and_b32 v11, 8, v9")
        a("v_add_u32 v10, v10, v11")
        a("buffer_load_dwordx2 %s, v10, s[20:23], s46 offen" % (v(b + 4, 2)))
        a("buffer_load_dwordx2 %s, v9, s[24:27], s4 offen" % (v(b + 6, 2)))
    a("v_mul_u32_u24 v7, %d, v5" % K3_PITCH)
    a("v_lshl_add_u32 v7, v6, 4, v7")
    a("s_mul_i32 s10, s28, %d" % K3_PART)
    a("v_add_u32 v7, s10, v7")
    a("s_nop 7")
    for i in range(4):
        for j in range(5):
            a("ds_write_b128 v7, %s offset:%d" % (v(12 + (i * 5 + j) * 4, 4), 16 * i * K3_PITCH + j * 64))
    a("s_mov_b32 s10, %s" % fhex(-1.4426950408889634))
    a("s_mov_b32 s11, %s" % fhex(-1.4426950408889634))
    a("s_waitcnt lgkmcnt(0)")
    a("s_barrier")
    stamp(a, 2)
    P = 140
    for j in range(5):
        b = E + 8 * j
        for w in range(4):
            a("ds_read_b128 %s, v%d offset:%d" % (v(P + 16 * j + 4 * w, 4), b + 1, w * K3_PART))
    J = range(5)
    X = lambda j: 12 + 16 * j
    def unpack4(d, s0):
        a("v_lshlrev_b32 v%d, 16, v%d" % (d, s0))
        a("v_and_b32 v%d, 0xffff0000, v%d" % (d + 1, s0))
        a("v_lshlrev_b32 v%d, 16, v%d" % (d + 2, s0 + 1))
        a("v_and_b32 v%d, 0xffff0000, v%d" % (d + 3, s0 + 1))
    a("s_waitcnt vmcnt(0)")
    for j in J: unpack4(X(j), E + 8 * j + 4)
    for j in J: unpack4(X(j) + 4, E + 8 * j + 6)
    for j in J:
        for h in (0, 2): a(pk("mul", X(j) + h, X(j) + h, X(j) + 4 + h))
    for j in J:
        a("v_cvt_pk_bf16_f32 v%d, v%d, v%d" % (X(j) + 4, X(j), X(j) + 1))
        a("v_cvt_pk_bf16_f32 v%d, v%d, v%d" % (X(j) + 5, X(j) + 2, X(j) + 3))
    for j in J: unpack4(X(j), X(j) + 4)
    for j in J: unpack4(X(j) + 8, E + 8 * j + 2)
    a("s_waitcnt lgkmcnt(0)")
    for j in J:
        p = P + 16 * j
        for h in (0, 2):
            a(pk("add", p + h, p + h, p + 4 + h))
            a(pk("add", p + 8 + h, p + 8 + h, p + 12 + h))
    for j in J:
        p = P + 16 * j
        for h in (0, 2): a("v_pk_fma_f32 %s, %s, 2.0, %s op_sel_hi:[1,0,1]" % (v(X(j) + h, 2), v(p + h, 2), v(X(j) + h, 2)))
        a("v_cvt_pk_bf16_f32 v%d, v%d, v%d" % (X(j) + 4, p + 8, p + 9))
        a("v_cvt_pk_bf16_f32 v%d, v%d, v%d" % (X(j) + 5, p + 10, p + 11))
    for j in J: unpack4(P + 16 * j + 8, X(j) + 4)
    for j in J:
        p = P + 16 * j
        for h in (0, 2): a("v_pk_mul_f32 %s, %s, s[10:11]" % (v(p + 12 + h, 2), v(p + 8 + h, 2)))
    for j in J:
        for e in range(4): a("v_exp_f32 v%d, v%d" % (P + 16 * j + 12 + e, P + 16 * j + 12 + e))
    for j in J:
        p = P + 16 * j
        for h in (0, 2): a("v_pk_add_f32 %s, %s, 1.0 op_sel_hi:[1,0]" % (v(p + 12 + h, 2), v(p + 12 + h, 2)))
    for j in J:
        for e in range(4): a("v_rcp_f32 v%d, v%d" % (P + 16 * j + 12 + e, P + 16 * j + 12 + e))
    for j in J:
        p = P + 16 * j
        for h in (0, 2): a(pk("mul", p + 12 + h, p + 12 + h, p + 8 + h))
    for j in J:
        p = P + 16 * j
        a("v_cvt_pk_bf16_f32 v%d, v%d, v%d" % (X(j) + 4, p + 12, p + 13))
        a("v_cvt_pk_bf16_f32 v%d, v%d, v%d" % (X(j) + 5, p + 14, p + 15))
    for j in J: unpack4(P + 16 * j + 12, X(j) + 4)
    for j in J:
        p = P + 16 * j
        for h in (0, 2): a(pk("mul", X(j) + h, X(j) + h, p + 12 + h))
    for j in J:
        for h in (0, 2): a(pk("add", X(j) + h, X(j) + h, X(j) + 8 + h))
        a("v_lshlrev_b32 v%d, 1, v%d" % (X(j) + 4, E + 8 * j))
    for j in J:
        a("buffer_store_dwordx4 %s, v%d, s[32:35], s5 offen sc1" % (v(X(j), 4), X(j) + 4))
    if STAMP:
        a("s_waitcnt vmcnt(0)")
        stamp(a, 3)
        a("s_memrealtime s[68:69]")
        a("s_waitcnt lgkmcnt(0)")
        a("v_mov_b32 v255, s68")
        a("buffer_store_dword v255, v254, s[60:63], s64 offen offset:20")
    a.lab("K3_END")
    a("s_endpgm")
```

```python
import sys, struct
NAME = "recurrent_scan__ssm_conv_s5__dense_activation_silu__prompt"

WS_XN    = 0x000000
WS_W1T   = 0x280000
WS_W2T   = 0x460000
WS_CONST = 0x640000
WS_AGG   = 0x1600000
WS_H     = 0x680000
WS_H1    = 0xB80000
WS_BRE   = 0x1180000
WS_BIM   = 0x1248000
WS_CRE   = 0x1310000
WS_CIM   = 0x13D8000
SZ_SQ = 640*640*2
SZ_XN = 2048*640*2; SZ_W = 640*1536*2; SZ_CONST = 640*64; SZ_PW = 640*256; SZ_AGG = 8*16*80*16
SZ_H = 2048*1280*2; SZ_H1 = 2048*1536*2

KA = dict(x=0, lre=8, lim=16, bre=24, bim=32, cre=40, cim=48, ldt=56, dsk=64, bx=72, w1=80, w2=88, out=96, dbg=104, ws=112)

def f2u(f):
    return struct.unpack("<I", struct.pack("<f", f))[0]
def fhex(f):
    return "0x%08x" % f2u(f)

class A:
    def __init__(s):
        s.L = []
    def __call__(s, t):
        for l in t.strip("\n").split("\n"):
            l = l.strip()
            if l: s.L.append(l if l.endswith(":") else "    " + l)
    def lab(s, l): s.L.append(l + ":")
    def c(s, t): s.L.append("    ; " + t)
    def text(s): return "\n".join(s.L) + "\n"

def v(i, n=1):
    return "v%d" % i if n == 1 else "v[%d:%d]" % (i, i + n - 1)
def sr(i, n=1):
    return "s%d" % i if n == 1 else "s[%d:%d]" % (i, i + n - 1)

def srd(a, d, base, off, size):
    if off:
        a("s_add_u32 s%d, s%d, 0x%x" % (d, base, off))
        a("s_addc_u32 s%d, s%d, 0" % (d + 1, base + 1))
    else:
        a("s_mov_b32 s%d, s%d" % (d, base))
        a("s_mov_b32 s%d, s%d" % (d + 1, base + 1))
    a("s_and_b32 s%d, s%d, 0xffff" % (d + 1, d + 1))
    a("s_mov_b32 s%d, 0x%x" % (d + 2, size))
    a("s_mov_b32 s%d, 0x00020000" % (d + 3))

def wave_sum(a, x, t):
    for p in ["quad_perm:[1,0,3,2]", "quad_perm:[2,3,0,1]", "row_half_mirror", "row_mirror"]:
        a("s_nop 1")
        a("v_add_f32_dpp v%d, v%d, v%d %s row_mask:0xf bank_mask:0xf" % (t, x, x, p))
        a("v_mov_b32 v%d, v%d" % (x, t))
    a("s_nop 1")
    for i in range(4):
        a("v_readlane_b32 s%d, v%d, %d" % (20 + i, x, 16 * i))
    a("s_nop 1")
    a("v_mov_b32 v%d, s20" % x)
    a("v_add_f32 v%d, s21, v%d" % (x, x))
    a("v_mov_b32 v%d, s22" % t)
    a("v_add_f32 v%d, s23, v%d" % (t, t))
    a("v_add_f32 v%d, v%d, v%d" % (x, x, t))

def div_refine(a, q, n, d, r, t):
    a("v_mul_f32 v%d, v%d, v%d" % (q, n, r))
    a("v_fma_f32 v%d, -v%d, v%d, v%d" % (t, q, d, n))
    a("v_fma_f32 v%d, v%d, v%d, v%d" % (q, t, r, q))

def bf16r(a, d, x):
    a("v_cvt_pk_bf16_f32 v%d, v%d, v%d" % (d, x, x))
    a("v_lshlrev_b32 v%d, 16, v%d" % (d, d))

def exp_acc(a, d, x, t0, t1):
    a("v_mul_f32 v%d, s30, v%d" % (t0, x))
    a("v_fma_f32 v%d, v%d, s30, -v%d" % (t1, x, t0))
    a("v_fma_f32 v%d, v%d, s31, v%d" % (t1, x, t1))
    a("v_exp_f32 v%d, v%d" % (d, t0))
    a("v_mul_f32 v%d, s32, v%d" % (t1, t1))
    a("v_fma_f32 v%d, v%d, v%d, v%d" % (d, d, t1, d))

def cmul(a, dr, di, ar, ai, br, bi):
    a("v_mul_f32 v%d, v%d, v%d" % (dr, ar, br))
    a("v_fma_f32 v%d, -v%d, v%d, v%d" % (dr, ai, bi, dr))
    a("v_mul_f32 v%d, v%d, v%d" % (di, ar, bi))
    a("v_fma_f32 v%d, v%d, v%d, v%d" % (di, ai, br, di))

K0_LN = 128; K0_CP = K0_LN + 40; K0_T1 = K0_CP + 60; K0_T2 = K0_T1; K0_C = K0_T2 + 3; K0_Z = K0_C + 10
K0_LDS = 32768
def wave_sum4(a, xs, ts):
    for p in ["quad_perm:[1,0,3,2]", "quad_perm:[2,3,0,1]", "row_half_mirror", "row_mirror"]:
        for x, t in zip(xs, ts):
            a("v_add_f32_dpp v%d, v%d, v%d %s row_mask:0xf bank_mask:0xf" % (t, x, x, p))
        for x, t in zip(xs, ts):
            a("v_mov_b32 v%d, v%d" % (x, t))
        a("s_nop 1")
    for n, x in enumerate(xs):
        for i in range(4):
            a("v_readlane_b32 s%d, v%d, %d" % (40 + 4 * n + i, x, 16 * i))
    a("s_nop 1")
    for n, (x, t) in enumerate(zip(xs, ts)):
        a("v_mov_b32 v%d, s%d" % (x, 40 + 4 * n))
        a("v_add_f32 v%d, s%d, v%d" % (x, 41 + 4 * n, x))
        a("v_mov_b32 v%d, s%d" % (t, 42 + 4 * n))
        a("v_add_f32 v%d, s%d, v%d" % (t, 43 + 4 * n, t))
        a("v_add_f32 v%d, v%d, v%d" % (x, x, t))

def gen_k0(a):
    a.lab("k0_kernel")
    a("s_cmp_ge_u32 s2, %d" % K0_Z)
    a("s_cbranch_scc1 K0_END")
    a("s_load_dwordx2 s[6:7], s[0:1], %d" % KA["ws"])
    a("s_cmp_ge_u32 s2, %d" % K0_LN)
    a("s_cbranch_scc1 K0_NOTLN")
    a("s_load_dwordx2 s[4:5], s[0:1], %d" % KA["x"])
    a("v_lshrrev_b32 v1, 6, v0")
    a("v_and_b32 v2, 63, v0")
    a("v_lshlrev_b32 v1, 2, v1")
    a("v_lshlrev_b32 v3, 8, v2")
    a("v_lshl_add_u32 v3, v1, 4, v3")
    a("v_lshrrev_b32 v4, 2, v2")
    a("v_lshlrev_b32 v4, 8, v4")
    a("v_and_b32 v5, 3, v2")
    a("v_lshl_add_u32 v4, v5, 2, v4")
    a("v_lshl_add_u32 v4, v1, 4, v4")
    a("v_add_u32 v4, %d, v4" % (64 * 256))
    a("s_lshl_b32 s3, s2, 4")
    a("v_add_u32 v1, s3, v1")
    a("v_mul_u32_u24 v1, 1280, v1")
    a("v_lshlrev_b32 v5, 2, v2")
    a("v_add_u32 v5, v5, v1")
    a("v_lshlrev_b32 v2, 4, v2")
    a("v_add_u32 v2, v2, v1")
    a("s_waitcnt lgkmcnt(0)")
    srd(a, 8, 4, 0, SZ_XN)
    srd(a, 12, 6, WS_XN, SZ_XN)
    RB = lambda n: 16 + 24 * n
    for n in range(4):
        a("s_mov_b32 s3, %d" % (1280 * n))
        a("buffer_load_dwordx4 %s, v2, s[8:11], s3 offen" % (v(RB(n), 4)))
        a("buffer_load_dword v%d, v5, s[8:11], s3 offen offset:1024" % (RB(n) + 4))
    a("v_mov_b32 v8, %s" % fhex(640.0))
    a("v_mov_b32 v9, %s" % fhex(1.0 / 640.0))
    a("s_waitcnt vmcnt(0)")
    for n in range(4):
        b = RB(n)
        for i in range(5):
            a("v_lshlrev_b32 v%d, 16, v%d" % (b + 6 + 2 * i, b + i))
            a("v_and_b32 v%d, 0xffff0000, v%d" % (b + 7 + 2 * i, b + i))
        a("v_add_f32 v%d, v%d, v%d" % (b + 16, b + 6, b + 7))
        a("v_add_f32 v%d, v%d, v%d" % (b + 17, b + 8, b + 9))
        a("v_add_f32 v%d, v%d, v%d" % (b + 18, b + 10, b + 11))
        a("v_add_f32 v%d, v%d, v%d" % (b + 19, b + 12, b + 13))
        a("v_add_f32 v%d, v%d, v%d" % (b + 20, b + 14, b + 15))
        a("v_add_f32 v%d, v%d, v%d" % (b + 16, b + 16, b + 17))
        a("v_add_f32 v%d, v%d, v%d" % (b + 18, b + 18, b + 19))
        a("v_add_f32 v%d, v%d, v%d" % (b + 16, b + 16, b + 18))
        a("v_add_f32 v%d, v%d, v%d" % (b + 16, b + 16, b + 20))
    a("s_nop 1")
    wave_sum4(a, [RB(n) + 16 for n in range(4)], [RB(n) + 17 for n in range(4)])
    for n in range(4):
        b = RB(n)
        div_refine(a, b + 18, b + 16, 8, 9, b + 17)
        a("v_mov_b32 v%d, 0" % (b + 16))
        for i in range(10):
            a("v_sub_f32 v%d, v%d, v%d" % (b + 17, b + 6 + i, b + 18))
            a("v_fma_f32 v%d, v%d, v%d, v%d" % (b + 16, b + 17, b + 17, b + 16))
    a("s_nop 1")
    wave_sum4(a, [RB(n) + 16 for n in range(4)], [RB(n) + 17 for n in range(4)])
    for n in range(4):
        b = RB(n)
        div_refine(a, b + 19, b + 16, 8, 9, b + 17)
        bf16r(a, b + 18, b + 18)
        bf16r(a, b + 19, b + 19)
        a("v_add_f32 v%d, %s, v%d" % (b + 19, fhex(1e-5), b + 19))
        bf16r(a, b + 19, b + 19)
        a("v_sqrt_f32 v%d, v%d" % (b + 20, b + 19))
        a("s_nop 0")
        a("v_rcp_f32 v%d, v%d" % (b + 21, b + 20))
        a("v_fma_f32 v%d, -v%d, v%d, v%d" % (b + 17, b + 20, b + 20, b + 19))
        a("v_mul_f32 v%d, 0.5, v%d" % (b + 21, b + 21))
        a("v_fma_f32 v%d, v%d, v%d, v%d" % (b + 20, b + 17, b + 21, b + 20))
        bf16r(a, b + 20, b + 20)
        a("v_rcp_f32 v%d, v%d" % (b + 21, b + 20))
        a("s_nop 0")
        for i in range(5):
            a("v_sub_f32 v%d, v%d, v%d" % (b + 16, b + 6 + 2 * i, b + 18))
            a("v_sub_f32 v%d, v%d, v%d" % (b + 17, b + 7 + 2 * i, b + 18))
            a("v_cvt_pk_bf16_f32 v%d, v%d, v%d" % (b + 16, b + 16, b + 17))
            a("v_and_b32 v%d, 0xffff0000, v%d" % (b + 17, b + 16))
            a("v_lshlrev_b32 v%d, 16, v%d" % (b + 16, b + 16))
            div_refine(a, b + 22, b + 16, b + 20, b + 21, b + 5)
            div_refine(a, b + 23, b + 17, b + 20, b + 21, b + 5)
            a("v_cvt_pk_bf16_f32 v%d, v%d, v%d" % (b + i, b + 22, b + 23))
        a("ds_write_b128 v3, %s offset:%d" % (v(b, 4), 16 * n))
        a("ds_write_b32 v4, v%d offset:%d" % (b + 4, 16 * n))
    a("v_lshlrev_b32 v1, 4, v0")
    a("s_mul_i32 s3, s2, 20480")
    a("s_waitcnt lgkmcnt(0)")
    a("s_barrier")
    for j in range(5):
        a("ds_read_b128 %s, v1 offset:%d" % (v(16 + 4 * j, 4), 4096 * j))
    for j in range(5):
        a("s_waitcnt lgkmcnt(%d)" % (4 - j))
        a("s_add_u32 s4, s3, %d" % (4096 * j))
        a("buffer_store_dwordx4 %s, v1, s[12:15], s4 offen" % v(16 + 4 * j, 4))
    a("s_endpgm")
    a.lab("K0_NOTLN")
    a("s_cmp_ge_u32 s2, %d" % K0_CP)
    a("s_cbranch_scc1 K0_NOTCP")
    a("s_load_dwordx8 s[16:23], s[0:1], %d" % KA["bre"])
    a("s_sub_u32 s3, s2, %d" % K0_LN)
    a("s_mul_hi_u32 s24, s3, 0x%x" % ((2**32 + 19) // 20))
    a("s_mul_i32 s25, s24, 20")
    a("s_sub_u32 s25, s3, s25")
    a("s_lshl_b32 s25, s25, 1")
    a("v_and_b32 v1, 15, v0")
    a("v_lshrrev_b32 v3, 4, v0")
    a("v_mul_u32_u24 v1, 1280, v1")
    a("v_lshlrev_b32 v2, 4, v0")
    a("s_mul_i32 s3, s25, 20480")
    a("s_waitcnt lgkmcnt(0)")
    a("s_cmp_ge_u32 s24, 2")
    a("s_cbranch_scc1 K0_CC")
    a("v_lshl_add_u32 v1, v3, 4, v1")
    a("s_cmp_eq_u32 s24, 1")
    a("s_cselect_b32 s16, s18, s16")
    a("s_cselect_b32 s17, s19, s17")
    srd(a, 8, 16, 0, SZ_SQ)
    srd(a, 12, 6, WS_BRE, 2 * SZ_SQ)
    a("s_mul_i32 s4, s24, %d" % SZ_SQ)
    a("s_add_u32 s4, s4, s3")
    a("s_add_u32 s26, s3, 20480")
    for h in range(2):
        for j in range(5):
            a("buffer_load_dwordx4 %s, v1, s[8:11], s%d offen offset:%d" % (v(4 + 20 * h + 4 * j, 4), 3 if h == 0 else 26, 256 * j))
    for j in range(10):
        a("s_waitcnt vmcnt(%d)" % (9 - j + j * 0 if False else 9 - j))
        a("s_add_u32 s5, s4, %d" % (4096 * j))
        a("buffer_store_dwordx4 %s, v2, s[12:15], s5 offen" % v(4 + 4 * j, 4))
    a("s_endpgm")
    a.lab("K0_CC")
    a("v_lshl_add_u32 v1, v3, 3, v1")
    srd(a, 8, 20, 0, SZ_SQ)
    srd(a, 28, 22, 0, SZ_SQ)
    srd(a, 12, 6, WS_CRE, 2 * SZ_SQ)
    a("s_sub_u32 s24, s24, 2")
    a("s_mul_i32 s4, s24, 640")
    a("s_add_u32 s3, s3, s4")
    a("s_add_u32 s33, s3, 20480")
    a("s_mul_i32 s4, s25, 40960")
    a("s_mul_i32 s5, s24, 20480")
    a("s_add_u32 s4, s4, s5")
    for h in range(2):
        for j in range(5):
            b = 4 + 20 * h + 4 * j
            a("buffer_load_dwordx2 %s, v1, s[8:11], s%d offen offset:%d" % (v(b, 2), 3 if h == 0 else 33, 128 * j))
            a("buffer_load_dwordx2 %s, v1, s[28:31], s%d offen offset:%d" % (v(b + 2, 2), 3 if h == 0 else 33, 128 * j))
    a("s_mov_b32 s26, 0x05040100")
    a("s_mov_b32 s27, 0x07060302")
    a("s_mov_b32 s32, 0x80008000")
    a("s_waitcnt vmcnt(0)")
    for h in range(2):
        for j in range(5):
            b = 4 + 20 * h + 4 * j; d = 48 + 20 * h + 4 * j
            a("v_xor_b32 v%d, s32, v%d" % (b + 2, b + 2))
            a("v_xor_b32 v%d, s32, v%d" % (b + 3, b + 3))
            a("v_perm_b32 v%d, v%d, v%d, s26" % (d, b + 2, b))
            a("v_perm_b32 v%d, v%d, v%d, s27" % (d + 1, b + 2, b))
            a("v_perm_b32 v%d, v%d, v%d, s26" % (d + 2, b + 3, b + 1))
            a("v_perm_b32 v%d, v%d, v%d, s27" % (d + 3, b + 3, b + 1))
            a("s_add_u32 s5, s4, %d" % (40960 * h + 4096 * j))
            a("buffer_store_dwordx4 %s, v2, s[12:15], s5 offen" % v(d, 4))
    a("s_endpgm")
    a.lab("K0_NOTCP")
    a("s_cmp_ge_u32 s2, %d" % K0_T2)
    a("s_cbranch_scc1 K0_NOTTR")
    a("s_cmp_ge_u32 s2, %d" % K0_T1)
    a("s_cbranch_scc1 K0_TR2")
    a("s_load_dwordx2 s[4:5], s[0:1], %d" % KA["w1"])
    a("s_sub_u32 s3, s2, %d" % K0_CP)
    a("s_mul_hi_u32 s18, s3, 0x%x" % ((2**32 + 5) // 6))
    a("s_mul_i32 s19, s18, 6")
    a("s_sub_u32 s19, s3, s19")
    a("s_lshl_b32 s19, s19, 2")
    a("s_mov_b32 s16, 3072")
    a("s_mov_b32 s17, 20480")
    a("s_mov_b32 s22, 128")
    a("s_mov_b32 s23, %d" % (4 * 20480))
    a("s_waitcnt lgkmcnt(0)")
    srd(a, 12, 6, WS_W1T, SZ_W)
    a("s_branch K0_TRGO")
    a.lab("K0_TR2")
    a("s_load_dwordx2 s[4:5], s[0:1], %d" % KA["w2"])
    a("s_sub_u32 s3, s2, %d" % K0_T1)
    a("s_mul_hi_u32 s18, s3, 0x%x" % ((2**32 + 9) // 10))
    a("s_mul_i32 s19, s18, 10")
    a("s_sub_u32 s19, s3, s19")
    a("s_lshl_b32 s18, s18, 2")
    a("s_mov_b32 s16, 1280")
    a("s_mov_b32 s17, 49152")
    a("s_mov_b32 s22, %d" % (64 * 1280))
    a("s_mov_b32 s23, 2048")
    a("s_waitcnt lgkmcnt(0)")
    srd(a, 12, 6, WS_W2T, SZ_W)
    a.lab("K0_TRGO")
    srd(a, 8, 4, 0, SZ_W)
    a("s_lshl_b32 s20, s18, 11")
    a("s_lshl_b32 s21, s19, 2")
    a("s_mul_i32 s21, s21, s17")
    a("s_add_u32 s20, s20, s21")
    a("s_lshl_b32 s18, s18, 6")
    a("s_lshl_b32 s19, s19, 6")
    a("v_lshrrev_b32 v1, 3, v0")
    a("v_and_b32 v2, 7, v0")
    a("v_add_u32 v3, s18, v1")
    a("v_mul_lo_u32 v3, v3, s16")
    a("v_lshlrev_b32 v4, 4, v2")
    a("v_add_u32 v3, v3, v4")
    a("s_lshl_b32 s3, s19, 1")
    a("v_add_u32 v3, s3, v3")
    a("s_lshl_b32 s3, s16, 5")
    a("s_mov_b32 s24, 0")
    for t in range(4):
        a("s_add_u32 s25, s24, s3")
        a("buffer_load_dwordx4 %s, v3, s[8:11], s24 offen" % v(8 + 8 * t, 4))
        a("buffer_load_dwordx4 %s, v3, s[8:11], s25 offen" % v(12 + 8 * t, 4))
        a("s_add_u32 s24, s24, s22")
    a("v_lshlrev_b32 v5, 7, v1")
    a("v_add_u32 v5, v5, v4")
    for t in range(4):
        a("s_waitcnt vmcnt(%d)" % (6 - 2 * t))
        a("ds_write_b128 v5, %s offset:%d" % (v(8 + 8 * t, 4), 8192 * t))
        a("ds_write_b128 v5, %s offset:%d" % (v(12 + 8 * t, 4), 8192 * t + 4096))
    a("v_and_b32 v1, 15, v0")
    a("v_lshrrev_b32 v2, 4, v0")
    a("v_and_b32 v2, 7, v2")
    a("v_lshrrev_b32 v6, 7, v0")
    a("v_lshlrev_b32 v5, 10, v2")
    a("v_lshl_add_u32 v5, v1, 1, v5")
    a("v_lshl_add_u32 v5, v6, 5, v5")
    a("v_mul_lo_u32 v3, v6, s17")
    a("v_lshl_add_u32 v3, v2, 8, v3")
    a("v_lshl_add_u32 v3, v1, 4, v3")
    a("s_lshl_b32 s21, s17, 1")
    a("s_waitcnt lgkmcnt(0)")
    a("s_barrier")
    for t in range(4):
        b = 8 + 24 * (t % 2)
        for h in range(2):
            for jj in range(8):
                a("ds_read_u16 v%d, v5 offset:%d" % (b + 8 * h + jj, 8192 * t + 128 * jj + 64 * h))
        a("s_waitcnt lgkmcnt(0)")
        for jj in range(8):
            a("v_lshl_or_b32 v%d, v%d, 16, v%d" % (b + 16 + jj, b + 1 + 2 * jj, b + 2 * jj))
        a("s_add_u32 s25, s20, s21")
        a("buffer_store_dwordx4 %s, v3, s[12:15], s20 offen" % v(b + 16, 4))
        a("buffer_store_dwordx4 %s, v3, s[12:15], s25 offen" % v(b + 20, 4))
        a("s_add_u32 s20, s20, s23")
    a("s_endpgm")
    a.lab("K0_NOTTR")
    a("s_cmp_ge_u32 s2, %d" % K0_C)
    a("s_cbranch_scc1 K0_ZERO")
    a("s_load_dwordx4 s[16:19], s[0:1], %d" % KA["lre"])
    a("s_load_dwordx2 s[4:5], s[0:1], %d" % KA["ldt"])
    a("s_sub_u32 s3, s2, %d" % K0_T2)
    a("s_lshl_b32 s3, s3, 8")
    a("v_add_u32 v1, s3, v0")
    a("v_lshlrev_b32 v2, 1, v1")
    a("s_waitcnt lgkmcnt(0)")
    srd(a, 8, 16, 0, 1280)
    srd(a, 12, 18, 0, 1280)
    srd(a, 24, 4, 0, 1280)
    srd(a, 36, 6, WS_CONST, SZ_CONST + SZ_PW)
    a("buffer_load_ushort v3, v2, s[8:11], 0 offen")
    a("buffer_load_ushort v4, v2, s[12:15], 0 offen")
    a("buffer_load_ushort v5, v2, s[24:27], 0 offen")
    L2E = 1.4426950408889634
    hi = struct.unpack("<f", struct.pack("<f", L2E))[0]
    a("s_mov_b32 s30, %s" % fhex(hi))
    a("s_mov_b32 s31, %s" % fhex(L2E - hi))
    a("s_mov_b32 s32, %s" % fhex(0.6931471805599453))
    I2P = 0.15915494309189535
    hi2 = struct.unpack("<f", struct.pack("<f", I2P))[0]
    a("s_mov_b32 s33, %s" % fhex(hi2))
    a("s_mov_b32 s34, %s" % fhex(I2P - hi2))
    a("s_waitcnt vmcnt(0)")
    a("v_lshlrev_b32 v3, 16, v3")
    a("v_lshlrev_b32 v4, 16, v4")
    a("v_lshlrev_b32 v5, 16, v5")
    exp_acc(a, 6, 5, 7, 8)
    bf16r(a, 6, 6)
    a("v_mul_f32 v7, v6, v3")
    a("v_mul_f32 v8, v6, v4")
    exp_acc(a, 9, 7, 10, 11)
    a("v_mul_f32 v10, s33, v8")
    a("v_fma_f32 v11, v8, s33, -v10")
    a("v_fma_f32 v11, v8, s34, v11")
    a("v_fract_f32 v10, v10")
    a("v_add_f32 v10, v10, v11")
    a("v_cos_f32 v12, v10")
    a("v_sin_f32 v13, v10")
    a("s_nop 0")
    a("v_mul_f32 v18, v9, v12")
    a("v_mul_f32 v19, v9, v13")
    a("v_add_f32 v10, -1.0, v18")
    a("v_mul_f32 v11, v3, v3")
    a("v_fma_f32 v11, v4, v4, v11")
    a("v_rcp_f32 v12, v11")
    a("v_mul_f32 v13, v10, v3")
    a("v_fma_f32 v13, v19, v4, v13")
    a("v_mul_f32 v14, v19, v3")
    a("v_fma_f32 v14, -v10, v4, v14")
    div_refine(a, 16, 13, 11, 12, 15)
    div_refine(a, 17, 14, 11, 12, 15)
    cmul(a, 20, 21, 18, 19, 18, 19)
    cmul(a, 22, 23, 20, 21, 18, 19)
    cmul(a, 24, 25, 20, 21, 20, 21)
    cmul(a, 28, 29, 24, 25, 24, 25)
    cmul(a, 26, 27, 28, 29, 28, 29)
    cmul(a, 28, 29, 26, 27, 26, 27)
    cmul(a, 30, 31, 28, 29, 28, 29)
    cmul(a, 26, 27, 30, 31, 30, 31)
    a("v_lshlrev_b32 v2, 6, v1")
    a("v_cmp_gt_u32 vcc, 640, v1")
    a("s_and_saveexec_b64 s[40:41], vcc")
    a("s_cbranch_execz K0_END")
    for d, sgc in zip(range(40, 52), [16, 17, 18, 20, 22, 24, 19, 21, 23, 25, 26, 27]):
        a("v_mov_b32 v%d, v%d" % (d, sgc))
    a("buffer_store_dwordx4 v[40:43], v2, s[36:39], 0 offen")
    a("buffer_store_dwordx4 v[44:47], v2, s[36:39], 0 offen offset:16")
    a("buffer_store_dwordx4 v[48:51], v2, s[36:39], 0 offen offset:32")
    a("v_lshlrev_b32 v2, 8, v1")
    a("v_add_u32 v2, %d, v2" % SZ_CONST)
    a("v_mov_b32 v32, 1.0")
    a("v_mov_b32 v33, 0")
    a("v_mov_b32 v34, v24")
    a("v_mov_b32 v35, v25")
    for jj in range(16):
        b = 32 + (jj % 2) * 4; nb = 32 + ((jj + 1) % 2) * 4
        a("buffer_store_dwordx4 %s, v2, s[36:39], 0 offen offset:%d" % (v(b, 4), 16 * jj))
        if jj < 15:
            cmul(a, nb, nb + 1, b + 2, b + 3, 24, 25)
            cmul(a, nb + 2, nb + 3, nb, nb + 1, 24, 25)
            a("s_nop 1")
    a("s_endpgm")
    a.lab("K0_ZERO")
    a("s_sub_u32 s3, s2, %d" % K0_C)
    a("s_lshl_b32 s3, s3, 8")
    a("v_add_u32 v1, s3, v0")
    a("v_lshlrev_b32 v1, 4, v1")
    a("v_mov_b32 v4, 0")
    a("v_mov_b32 v5, 0")
    a("v_mov_b32 v6, 0")
    a("v_mov_b32 v7, 0")
    a("s_waitcnt lgkmcnt(0)")
    srd(a, 8, 6, WS_AGG, SZ_AGG)
    for k in range(4):
        a("s_mov_b32 s3, %d" % (40960 * k))
        a("buffer_store_dwordx4 v[4:7], v1, s[8:11], s3 offen")
    a.lab("K0_END")
    a("s_endpgm")

def desc(name, vg, sg=102, lds_static=0):
    acc = min(256, (vg + 3) // 4 * 4)
    return """.amdhsa_kernel %s
  .amdhsa_next_free_vgpr %d
  .amdhsa_next_free_sgpr %d
  .amdhsa_accum_offset %d
  .amdhsa_group_segment_fixed_size 0
  .amdhsa_kernarg_size 120
  .amdhsa_user_sgpr_count 2
  .amdhsa_user_sgpr_kernarg_segment_ptr 1
  .amdhsa_system_sgpr_workgroup_id_x 1
  .amdhsa_float_denorm_mode_32 3
.end_amdhsa_kernel
""" % (name, vg, sg, acc)


import os
STAMP = int(os.environ.get("STAMP", "0"))
WS_ST = 0x1500000
def stamp_init(a):
    if not STAMP: return
    srd(a, 60, 6, WS_ST, 0x100000)
    a("s_lshl_b32 s64, s2, 8")
    a("s_lshl_b32 s65, s28, 6")
    a("s_add_u32 s64, s64, s65")
def stamp(a, i):
    if not STAMP: return
    a("s_memtime s[66:67]")
    a("s_waitcnt lgkmcnt(0)")
    a("v_mov_b32 v255, s66")
    a("v_mov_b32 v254, 0")
    a("s_nop 0")
    a("buffer_store_dword v255, v254, s[60:63], s64 offen offset:%d" % (4 * i))
```

```python
from gen import *
from gen_k13 import pk, interleave
STG = 40960; NST = 3
PK = int(os.environ.get('PK', '4'))
K1_CB = NST * STG
K1_PW = K1_CB + 3072
K1B_LDS = K1_PW + 12288
K1_T = 0; K1_P = 12288; K1_C = 24576; K1_O = 25600
ACC = 12; B0 = 108; B1 = 156; A0 = 204; A1 = 212
WS_ALL = 0x14A0000

def body(a, nu, nf, tag):
    NT = 2 * nu + nf
    nd = NT // 2
    per = 4 + nd
    nl = 4 * nu
    pitch = 128 * nu
    def acc(rt, ct): return ACC + (rt * NT + ct) * 4
    a("s_lshl_b32 s3, s30, 10")
    a("s_cmp_ge_u32 s28, %d" % nu)
    a("s_cbranch_scc1 K1_NOC" + tag)
    a("s_add_u32 s35, s3, s32")
    a("s_add_u32 m0, s32, %d" % K1_CB)
    a("s_nop 0")
    a("buffer_load_dwordx4 v1, s[16:19], s35 offen lds")
    a.lab("K1_NOC" + tag)
    a("s_lshl_b32 s3, s30, 12")
    a("s_add_u32 s3, s3, %d" % SZ_CONST)
    a("s_add_u32 s3, s3, s32")
    for k in range(nu):
        a("s_add_u32 m0, s32, %d" % (K1_PW + 4096 * k))
        a("s_add_u32 s35, s3, %d" % (4096 * k))
        a("buffer_load_dwordx4 v1, s[16:19], s35 offen lds")
    def dma_items(st):
        it = []
        for j in range(nd):
            base, off = (31, j * 20480) if j < nu else (47, (j - nu) * 40960)
            it.append("s_add_u32 m0, s%d, s32\ns_add_u32 m0, m0, %d\ns_add_u32 s35, s%d, %d\ns_add_u32 s35, s35, s53\nbuffer_load_dwordx4 v1, s[12:15], s35 offen lds" % (st, 4 * j * 1024, base, off))
        for rt in range(2):
            for ks in range(2):
                it.append("s_add_u32 m0, s%d, s54\ns_add_u32 m0, m0, %d\ns_add_u32 s35, s%d, %d\ns_add_u32 s35, s35, s53\nbuffer_load_dwordx4 v1, s[8:11], s35 offen lds" % (st, (rt * 2 + ks) * 1024, 33 + rt, ks * 1024))
        return it
    def rd_items(vb, va, ks, bset, aset):
        it = []
        for rt in range(2):
            it.append("ds_read_b128 %s, v%d offset:%d" % (v(aset + 4 * rt, 4), va, (rt * 2 + ks) * 1024))
        for ct in range(NT):
            it.append("ds_read_b128 %s, v%d offset:%d" % (v(bset + 4 * ct, 4), vb, (ct * 2 + ks) * 1024))
        return it
    def mf_list(bset, aset):
        L = []
        for ct in range(NT):
            for rt in range(2):
                Ar = v(aset + 4 * rt, 4); Br = v(bset + 4 * ct, 4); C = v(acc(rt, ct), 4)
                if ct < 2 * nu: L.append("v_mfma_f32_16x16x32_bf16 %s, %s, %s, %s" % (C, Ar, Br, C))
                else:           L.append("v_mfma_f32_16x16x32_bf16 %s, %s, %s, %s" % (C, Br, Ar, C))
        return L
    def set_addr():
        a("v_add_u32 v2, s50, v1"); a("v_add_u32 v3, s50, v7"); a("v_add_u32 v8, s51, v1"); a("v_add_u32 v9, s51, v7")
    def advance():
        a("s_mov_b32 s50, s51")
        a("s_add_u32 s51, s51, %d" % STG)
        a("s_cmp_eq_u32 s51, %d" % (NST * STG))
        a("s_cselect_b32 s51, 0, s51")
        a("s_add_u32 s53, s53, 2048")
        set_addr()
    a("s_mov_b32 s53, 0")
    for st in range(NST):
        a("s_mov_b32 s50, %d" % (st * STG))
        for x in dma_items(50): a(x)
        a("s_add_u32 s53, s53, 2048")
    a("s_mov_b32 s50, 0")
    a("s_mov_b32 s51, %d" % STG)
    set_addr()
    for r in range(2 * NT * 4): a("v_mov_b32 v%d, 0" % (ACC + r))
    a("s_waitcnt vmcnt(%d)" % (per * (NST - 1)))
    a("s_barrier")
    stamp(a, 1)
    for x in rd_items(2, 3, 0, B0, A0): a(x)
    a("s_mov_b32 s55, %d" % (10 - NST))
    a.lab("K1_LOOP" + tag)
    a("s_waitcnt lgkmcnt(0)")
    interleave(a, mf_list(B0, A0), rd_items(2, 3, 1, B1, A1))
    a("s_waitcnt vmcnt(%d) lgkmcnt(0)" % (per * (NST - 2)))
    a("s_barrier")
    interleave(a, mf_list(B1, A1), rd_items(8, 9, 0, B0, A0) + dma_items(50))
    advance()
    a("s_sub_u32 s55, s55, 1")
    a("s_cmp_lg_u32 s55, 0")
    a("s_cbranch_scc1 K1_LOOP" + tag)
    a("s_mov_b32 s55, %d" % (NST - 1))
    a.lab("K1_TAIL" + tag)
    a("s_waitcnt lgkmcnt(0)")
    interleave(a, mf_list(B0, A0), rd_items(2, 3, 1, B1, A1))
    a("s_waitcnt vmcnt(0) lgkmcnt(0)")
    a("s_barrier")
    interleave(a, mf_list(B1, A1), rd_items(8, 9, 0, B0, A0))
    advance()
    a("s_sub_u32 s55, s55, 1")
    a("s_cmp_lg_u32 s55, 0")
    a("s_cbranch_scc1 K1_TAIL" + tag)
    a("s_waitcnt lgkmcnt(0)")
    interleave(a, mf_list(B0, A0), rd_items(2, 3, 1, B1, A1))
    a("s_waitcnt lgkmcnt(0)")
    for m in mf_list(B1, A1): a(m)
    CU = lambda u: 108 + 12 * u + 48
    CU = lambda u: 144 + 12 * u - 36
    a("v_lshlrev_b32 v7, 6, v5")
    a("v_add_u32 v7, %d, v7" % K1_CB)
    a("s_lshl_b32 s3, s28, 3")
    a("v_add_u32 v8, s3, v6")
    a("v_mul_u32_u24 v8, %d, v8" % pitch)
    a("v_lshl_add_u32 v8, v5, 3, v8")
    a("v_add_u32 v9, %d, v8" % (4 * pitch))
    a("s_nop 7")
    for u in range(nu):
        for k in range(3):
            a("ds_read_b128 %s, v7 offset:%d" % (v(CU(u) + 4 * k, 4), u * 1024 + 16 * k))
    stamp(a, 2)
    a("s_barrier")
    a("s_waitcnt lgkmcnt(0)")
    UR = [(u, rt) for u in range(nu) for rt in range(2)]
    for u in range(nu):
        a("v_sub_f32 v%d, 0, v%d" % (CU(u) + 10, CU(u) + 6))
    for r in range(1, 4):
        for (u, rt) in UR:
            R = acc(rt, 2 * u) + r
            a("v_fmac_f32 v%d, v%d, v%d" % (R, CU(u) + 2, R - 1))
        for (u, rt) in UR:
            I = acc(rt, 2 * u + 1) + r
            a("v_fmac_f32 v%d, v%d, v%d" % (I, CU(u) + 2, I - 1))
        for (u, rt) in UR:
            R = acc(rt, 2 * u) + r; I = acc(rt, 2 * u + 1) + r
            a("v_fmac_f32 v%d, v%d, v%d" % (R, CU(u) + 10, I - 1))
        for (u, rt) in UR:
            R = acc(rt, 2 * u) + r; I = acc(rt, 2 * u + 1) + r
            a("v_fmac_f32 v%d, v%d, v%d" % (I, CU(u) + 6, R - 1))
    for (u, rt) in UR:
        a("ds_write2_b32 v%d, v%d, v%d offset0:%d offset1:%d" % (8 + rt, acc(rt, 2 * u) + 3, acc(rt, 2 * u + 1) + 3, u * 32, u * 32 + 1))
    TV = 168; S0 = 232; S1 = 234; L4 = 236; PUB = 240; VA = 244; VG = 245; BAD = 246; TMP = 247
    a("s_mul_i32 s3, s28, %d" % nl)
    a("v_add_u32 v%d, s3, v4" % TMP)
    a("v_lshlrev_b32 v%d, 3, v%d" % (VA, TMP))
    a("v_lshrrev_b32 v%d, 4, v%d" % (VG, TMP))
    a("v_lshlrev_b32 v%d, 12, v%d" % (VG, VG))
    a("v_and_b32 v%d, 15, v%d" % (BAD, TMP))
    a("v_lshl_add_u32 v%d, v%d, 4, v%d" % (VG, BAD, VG))
    a("v_lshlrev_b32 v%d, 6, v%d" % (TMP, TMP))
    a("v_add_u32 v%d, %d, v%d" % (TMP, K1_CB, TMP))
    a("s_lshl_b32 s42, s30, 12")
    a("s_lshl_b32 s3, s29, 8")
    a("s_add_u32 s3, s3, s42")
    a("s_waitcnt lgkmcnt(0)")
    a("s_barrier")
    stamp(a, 6)
    a("s_mov_b64 exec, 0x%x" % ((1 << nl) - 1))
    a("ds_read_b32 v%d, v%d offset:20" % (L4, TMP))
    a("ds_read_b32 v%d, v%d offset:36" % (L4 + 1, TMP))
    a("ds_read_b64 %s, v%d offset:40" % (v(L4 + 2, 2), TMP))
    for g in range(32):
        a("ds_read_b64 %s, v%d offset:%d" % (v(TV + 2 * g, 2), VA, K1_T + g * pitch))
    def hornerpk(src, dst, m, t):
        a(pk("fma", dst, m, src, t, sx=0))
        a(pk("fma", dst, m, src, dst, sx=1, sy='sw', neg=([1, 0, 0], [0, 0, 0])))
    a("v_mov_b32 v%d, 0" % S1)
    a("v_mov_b32 v%d, 0" % (S1 + 1))
    a("ds_write_b64 v%d, %s offset:%d" % (VA, v(S1, 2), K1_P))
    a("v_mov_b32 v%d, 1" % (PUB + 1))
    a("v_mov_b32 v%d, 1" % (PUB + 3))
    a("s_waitcnt lgkmcnt(1)")
    cur = TV
    for g in range(1, 32):
        a("ds_write_b64 v%d, %s offset:%d" % (VA, v(cur, 2), K1_P + g * pitch))
        nxt = S1 if cur != S1 else S0
        hornerpk(cur, nxt, L4, TV + 2 * g)
        cur = nxt
    a("v_mov_b32 v%d, v%d" % (PUB, cur))
    a("v_mov_b32 v%d, v%d" % (PUB + 2, cur + 1))
    a("buffer_store_dwordx4 %s, v%d, s[20:23], s3 offen sc0 sc1" % (v(PUB, 4), VG))
    stamp(a, 3)
    a("s_mov_b64 exec, -1")
    T3 = [248, 250, 252, 10, 2, 166]
    for p in (0, 2):
        for n, (u, rt) in enumerate(UR):
            a(pk("mul", T3[n], CU(u), acc(rt, 2 * u + 1) + p, sx=1))
        for n, (u, rt) in enumerate(UR):
            I = acc(rt, 2 * u + 1) + p
            a(pk("mul", I, CU(u), I, sx=0))
        for n, (u, rt) in enumerate(UR):
            I = acc(rt, 2 * u + 1) + p; R = acc(rt, 2 * u) + p
            a(pk("fma", I, CU(u), R, I, sx=1))
        for n, (u, rt) in enumerate(UR):
            R = acc(rt, 2 * u) + p
            a(pk("fma", R, CU(u), R, T3[n], sx=0, neg=([0, 0, 1], [0, 0, 1])))
    a("v_lshlrev_b32 v7, 4, v5")
    a("v_and_b32 v10, 1, v6")
    a("v_lshl_add_u32 v7, v10, 3, v7")
    a("v_lshrrev_b32 v10, 1, v6")
    a("v_lshl_add_u32 v7, v10, 8, v7")
    a("s_mul_i32 s36, s45, 49152")
    a("s_lshl_b32 s4, s46, 9")
    a("s_add_u32 s36, s36, s4")
    a("s_add_u32 s37, s36, 49152")
    a("s_mov_b32 s4, %s" % fhex(-1.4426950408889634))
    a("s_mov_b32 s5, s4")
    FT = [(rt, f) for rt in range(2) for f in range(nf)]
    def poll_loads(lab):
        for c in range(15):
            a("s_cmp_le_u32 s29, %d" % c)
            a("s_cbranch_scc1 " + lab)
            a("buffer_load_dwordx4 %s, v%d, s[20:23], s42 offen offset:%d sc0 sc1" % (v(TV + 4 * c, 4), VG, c * 256))
        a.lab(lab)
    for k in range(0, len(FT), 2):
        if k == PK * len(FT) // 8 // 2 * 2:
            a("s_mov_b64 exec, 0x%x" % ((1 << nl) - 1))
            poll_loads("K1_LD0" + tag)
            a("s_mov_b64 exec, -1")
        G = FT[k:k + 2]
        tt = [144, 156]
        for (rt, f), t in zip(G, tt):
            C = acc(rt, 2 * nu + f)
            a("v_cvt_pk_bf16_f32 v%d, v%d, v%d" % (t, C, C + 1))
            a("v_cvt_pk_bf16_f32 v%d, v%d, v%d" % (t + 1, C + 2, C + 3))
        for (rt, f), t in zip(G, tt):
            C = acc(rt, 2 * nu + f)
            a("v_lshlrev_b32 v%d, 16, v%d" % (C, t))
            a("v_and_b32 v%d, 0xffff0000, v%d" % (C + 1, t))
            a("v_lshlrev_b32 v%d, 16, v%d" % (C + 2, t + 1))
            a("v_and_b32 v%d, 0xffff0000, v%d" % (C + 3, t + 1))
        for (rt, f), t in zip(G, tt):
            C = acc(rt, 2 * nu + f)
            for h in (0, 2): a("v_pk_mul_f32 %s, %s, s[4:5]" % (v(t + 2 + h, 2), v(C + h, 2)))
        for (rt, f), t in zip(G, tt):
            for r in range(4): a("v_exp_f32 v%d, v%d" % (t + 2 + r, t + 2 + r))
        for (rt, f), t in zip(G, tt):
            for h in (0, 2): a("v_pk_add_f32 %s, %s, 1.0 op_sel_hi:[1,0]" % (v(t + 2 + h, 2), v(t + 2 + h, 2)))
        for (rt, f), t in zip(G, tt):
            for r in range(4): a("v_rcp_f32 v%d, v%d" % (t + 2 + r, t + 2 + r))
        for (rt, f), t in zip(G, tt):
            C = acc(rt, 2 * nu + f)
            for h in (0, 2): a(pk("mul", t + 2 + h, t + 2 + h, C + h))
        for (rt, f), t in zip(G, tt):
            a("v_cvt_pk_bf16_f32 v%d, v%d, v%d" % (t + 6, t + 2, t + 3))
            a("v_cvt_pk_bf16_f32 v%d, v%d, v%d" % (t + 7, t + 4, t + 5))
        for (rt, f), t in zip(G, tt):
            a("buffer_store_dwordx2 %s, v7, s[56:59], s%d offen offset:%d sc1" % (v(t + 6, 2), 36 + rt, f * 512))
    stamp(a, 9)
    a("s_mov_b64 exec, 0x%x" % ((1 << nl) - 1))
    a("s_mov_b32 s43, 0")
    a("s_waitcnt vmcnt(%d)" % (len(FT) - PK * len(FT) // 8 // 2 * 2 + (1 if STAMP else 0)))
    a("s_branch K1_LOADED2" + tag)
    a.lab("K1_POLL" + tag)
    poll_loads("K1_LOADED" + tag)
    a("s_waitcnt vmcnt(0)")
    a.lab("K1_LOADED2" + tag)
    a("v_mov_b32 v%d, 0" % BAD)
    for c in range(15):
        a("s_cmp_le_u32 s29, %d" % c)
        a("s_cbranch_scc1 K1_CHK" + tag)
        a("v_and_b32 v%d, v%d, v%d" % (TMP, TV + 4 * c + 1, TV + 4 * c + 3))
        a("v_xor_b32 v%d, 1, v%d" % (TMP, TMP))
        a("v_or_b32 v%d, v%d, v%d" % (BAD, BAD, TMP))
    a.lab("K1_CHK" + tag)
    a("v_cmp_ne_u32 vcc, 0, v%d" % BAD)
    a("s_add_u32 s43, s43, 1")
    a("s_cmp_ge_u32 s43, 0x40000")
    a("s_cbranch_scc1 K1_GOT" + tag)
    a("s_nop 4")
    a("s_cbranch_vccnz K1_POLL" + tag)
    a.lab("K1_GOT" + tag)
    stamp(a, 4)
    a("v_mov_b32 v%d, 0" % S0)
    a("v_mov_b32 v%d, 0" % (S0 + 1))
    for c in range(15):
        a("s_cmp_le_u32 s29, %d" % c)
        a("s_cbranch_scc1 K1_CARRY" + tag)
        a("v_mov_b32 v%d, v%d" % (TV + 4 * c + 1, TV + 4 * c + 2))
        hornerpk(S0, S1, L4 + 2, TV + 4 * c)
        a("v_mov_b32 v%d, v%d" % (S0, S1))
        a("v_mov_b32 v%d, v%d" % (S0 + 1, S1 + 1))
    a.lab("K1_CARRY" + tag)
    a("ds_write_b64 v%d, %s offset:%d" % (VA, v(S0, 2), K1_C))
    a("s_mov_b64 exec, -1")
    PV = 168; WV = 188; CV = 212
    a("s_lshl_b32 s3, s28, 6")
    a("s_add_u32 s3, s3, %d" % K1_PW)
    a("v_lshlrev_b32 v9, 8, v5")
    a("v_lshl_add_u32 v9, v6, 3, v9")
    a("v_add_u32 v9, s3, v9")
    for n, (u, rt) in enumerate(UR):
        a("ds_read_b64 %s, v9 offset:%d" % (v(WV + 2 * n, 2), u * 4096 + rt * 32))
    a("v_lshlrev_b32 v10, 3, v5")
    a("v_lshlrev_b32 v7, 6, v6")
    a("v_lshrrev_b32 v9, 2, v5")
    a("v_lshl_add_u32 v7, v9, 8, v7")
    a("v_and_b32 v9, 3, v5")
    a("v_lshl_add_u32 v7, v9, 2, v7")
    a("s_mul_i32 s44, s28, %d" % (2 * nu * 1024))
    a("s_add_u32 s44, s44, %d" % K1_O)
    a("v_add_u32 v7, s44, v7")
    a("v_add_u32 v11, s44, v1")
    a("s_mul_i32 s36, s45, 40960")
    a("s_lshl_b32 s4, s30, 10")
    a("s_add_u32 s36, s36, s4")
    a("s_add_u32 s37, s36, 40960")
    a("s_waitcnt lgkmcnt(0)")
    a("s_barrier")
    stamp(a, 7)
    for n, (u, rt) in enumerate(UR):
        a("ds_read_b64 %s, v8 offset:%d" % (v(PV + 2 * n, 2), K1_P + rt * 4 * pitch + u * 128))
    for u in range(nu):
        a("ds_read_b64 %s, v10 offset:%d" % (v(CV + 2 * u, 2), K1_C + u * 128))
    a("s_waitcnt lgkmcnt(0)")
    for n, (u, rt) in enumerate(UR):
        a(pk("fma", PV + 2 * n, WV + 2 * n, CV + 2 * u, PV + 2 * n, sx=0))
    for n, (u, rt) in enumerate(UR):
        a(pk("fma", PV + 2 * n, WV + 2 * n, CV + 2 * u, PV + 2 * n, sx=1, sy='sw', neg=([1, 0, 0], [0, 0, 0])))
    for n, (u, rt) in enumerate(UR):
        a(pk("mul", WV + 2 * n, CU(u), PV + 2 * n, sx=0))
    for n, (u, rt) in enumerate(UR):
        a(pk("fma", WV + 2 * n, CU(u), PV + 2 * n, WV + 2 * n, sx=1, sy='sw', neg=([1, 0, 0], [0, 0, 0])))
    for p in (0, 2):
        for n, (u, rt) in enumerate(UR):
            R = acc(rt, 2 * u) + p
            a(pk("fma", R, CU(u) + 2 + p, WV + 2 * n, R, sy=0))
        for n, (u, rt) in enumerate(UR):
            I = acc(rt, 2 * u + 1) + p
            a(pk("fma", I, CU(u) + 2 + p, WV + 2 * n, I, sy=1))
        for n, (u, rt) in enumerate(UR):
            R = acc(rt, 2 * u) + p
            a(pk("fma", R, CU(u) + 6 + p, WV + 2 * n, R, sy=1, neg=([1, 0, 0], [1, 0, 0])))
        for n, (u, rt) in enumerate(UR):
            I = acc(rt, 2 * u + 1) + p
            a(pk("fma", I, CU(u) + 6 + p, WV + 2 * n, I, sy=0))
    for r in range(4):
        for n, (u, rt) in enumerate(UR):
            R = acc(rt, 2 * u) + r; I = acc(rt, 2 * u + 1) + r
            a("v_cvt_pk_bf16_f32 v%d, v%d, v%d" % (R, R, I))
        for n, (u, rt) in enumerate(UR):
            a("ds_write_b32 v7, v%d offset:%d" % (acc(rt, 2 * u) + r, rt * nu * 1024 + u * 1024 + r * 16))
    a("s_waitcnt lgkmcnt(0)")
    for j in range(2 * nu):
        a("ds_read_b128 %s, v11 offset:%d" % (v(168 + 4 * j, 4), 1024 * j))
    for j in range(2 * nu):
        a("s_waitcnt lgkmcnt(%d)" % (2 * nu - 1 - j))
        a("buffer_store_dwordx4 %s, v1, s[24:27], s%d offen offset:%d sc1" % (v(168 + 4 * j, 4), 36 + j // nu, (j % nu) * 1024))
    if STAMP:
        stamp(a, 8)
        a("s_waitcnt vmcnt(0)")
        stamp(a, 5)
    a("s_endpgm")

def gen_k1b(a):
    a.lab("k1_kernel")
    a("s_cmp_ge_u32 s2, 256")
    a("s_cbranch_scc1 K1_END")
    a("s_load_dwordx2 s[6:7], s[0:1], %d" % KA["ws"])
    a("v_lshrrev_b32 v1, 6, v0")
    a("v_and_b32 v4, 63, v0")
    a("s_nop 0")
    a("v_readfirstlane_b32 s28, v1")
    a("s_and_b32 s3, s2, 7")
    a("s_lshr_b32 s4, s2, 3")
    a("s_and_b32 s29, s3, 1")
    a("s_lshl_b32 s29, s29, 3")
    a("s_and_b32 s5, s4, 7")
    a("s_add_u32 s29, s29, s5")
    a("s_lshr_b32 s48, s4, 3")
    a("s_and_b32 s5, s3, 6")
    a("s_and_b32 s49, s48, 1")
    a("s_add_u32 s49, s49, s5")
    a("v_and_b32 v5, 15, v4")
    a("v_lshrrev_b32 v6, 4, v4")
    a("v_lshlrev_b32 v1, 4, v4")
    a("s_lshl_b32 s32, s28, 10")
    a("s_lshl_b32 s33, s29, 3")
    a("s_lshl_b32 s3, s28, 1")
    a("s_add_u32 s45, s33, s3")
    a("s_mul_i32 s33, s45, 20480")
    a("s_add_u32 s34, s33, 20480")
    a("s_lshl_b32 s54, s28, 12")
    a("s_add_u32 s54, s54, 24576")
    a("v_add_u32 v7, s54, v1")
    a("s_mul_i32 s30, s49, 3")
    a("s_lshl_b32 s46, s49, 2")
    a("s_lshl_b32 s3, s49, 1")
    a("s_add_u32 s3, s3, 24")
    a("s_lshl_b32 s4, s49, 3")
    a("s_add_u32 s4, s4, 32")
    a("s_cmp_ge_u32 s48, 2")
    a("s_cselect_b32 s30, s3, s30")
    a("s_cselect_b32 s46, s4, s46")
    a("s_and_b32 s3, s28, 1")
    a("s_lshl_b32 s3, s3, 10")
    a("s_lshr_b32 s4, s28, 1")
    a("s_mul_i32 s31, s30, 20480")
    a("s_add_u32 s31, s31, s3")
    a("s_mul_i32 s5, s4, %d" % SZ_SQ)
    a("s_add_u32 s31, s31, s5")
    a("s_add_u32 s31, s31, %d" % WS_BRE)
    a("s_add_u32 s47, s46, s4")
    a("s_mul_i32 s47, s47, 20480")
    a("s_add_u32 s47, s47, s3")
    a("s_add_u32 s47, s47, %d" % WS_W1T)
    a("s_waitcnt lgkmcnt(0)")
    srd(a, 8, 6, WS_XN, SZ_XN)
    srd(a, 12, 6, 0, WS_ALL)
    srd(a, 16, 6, WS_CONST, SZ_CONST + SZ_PW)
    srd(a, 20, 6, WS_AGG, SZ_AGG)
    srd(a, 24, 6, WS_H, SZ_H)
    srd(a, 56, 6, WS_H1, SZ_H1)
    stamp_init(a); stamp(a, 0)
    a("s_cmp_ge_u32 s48, 2")
    a("s_cbranch_scc1 K1_TYPEB")
    body(a, 3, 4, "A")
    a.lab("K1_TYPEB")
    body(a, 2, 8, "B")
    a.lab("K1_END")
    a("s_endpgm")
```

```python
import sys
from gen import *
from gen_k13 import *
from gen_k1b import gen_k1b, K1B_LDS
import os
if os.environ.get('K1OLD') is None:
    gen_k1 = gen_k1b; K1_LDS = K1B_LDS
def main():
    out = sys.argv[1]
    only = sys.argv[2] if len(sys.argv) > 2 else "k0,k1,k3"
    only = only.split(",")
    hdr = open("cdna_kernels/%s.s.ref" % NAME).read().split("; Override launch")[0]
    launches = []
    if "k0" in only: launches.append("; @launch kernel=k0_kernel grid=(%d,1,1) block=(256,1,1) lds=%d" % (K0_Z, K0_LDS))
    if "k1" in only: launches.append("; @launch kernel=k1_kernel grid=(256,1,1) block=(256,1,1) lds=%d" % K1_LDS)
    if "k3" in only: launches.append("; @launch kernel=k3_kernel grid=(256,1,1) block=(256,1,1) lds=%d" % K3_LDS)
    t = hdr + "\n".join(launches) + "\n"
    t += '.amdgcn_target "amdgcn-amd-amdhsa--gfx950"\n.text\n'
    kern = []
    if "k0" in only: kern.append(("k0_kernel", gen_k0, 128))
    if "k1" in only: kern.append(("k1_kernel", gen_k1, 256))
    if "k3" in only: kern.append(("k3_kernel", gen_k3, 256))
    for n, g, vg in kern:
        a = A(); g(a)
        t += ".globl %s\n.p2align 8\n.type %s,@function\n" % (n, n) + a.text()
    t += '.section .rodata,"a"\n'
    for n, g, vg in kern:
        t += ".p2align 6\n" + desc(n, vg)
    open(out, "w").write(t)

main()
```

```python
from gen import *
from gen_k13 import pk, interleave
STG = 40960; NST = 3
PK = int(os.environ.get('PK', '4'))
PS = os.environ.get('PS', '')
NFA = int(os.environ.get('NFA', '5'))
K1_CB = NST * STG
K1_PW = K1_CB + 3072
K1_W = K1_PW + 12288
K1B_LDS = K1_W + 16384
K1_T = 0; K1_P = 12288; K1_C = 24576; K1_O = 25600
ACC = 12; B0 = 108; B1 = 156; A0 = 204; A1 = 212
WS_ALL = 0x14A0000

def body(a, nu, nf, tag):
    NT = 2 * nu + nf
    nd = (NT + 1) // 2
    per = 4 + NT // 2
    nl = 4 * nu
    pitch = 128 * nu
    def acc(rt, ct): return ACC + (rt * NT + ct) * 4
    a("s_lshl_b32 s3, s30, 10")
    a("s_cmp_ge_u32 s28, %d" % nu)
    a("s_cbranch_scc1 K1_NOC" + tag)
    a("s_add_u32 s35, s3, s32")
    a("s_add_u32 m0, s32, %d" % K1_CB)
    a("s_nop 0")
    a("buffer_load_dwordx4 v1, s[16:19], s35 offen lds")
    a.lab("K1_NOC" + tag)
    a("s_lshl_b32 s3, s30, 12")
    a("s_add_u32 s3, s3, %d" % SZ_CONST)
    a("s_add_u32 s3, s3, s32")
    for k in range(nu):
        a("s_add_u32 m0, s32, %d" % (K1_PW + 4096 * k))
        a("s_add_u32 s35, s3, %d" % (4096 * k))
        a("buffer_load_dwordx4 v1, s[16:19], s35 offen lds")
    uid = [0]
    def dma_items(st):
        it = []
        for j in range(nd):
            base, off = (31, j * 20480) if j < nu else (47, (j - nu) * 40960)
            x = "s_add_u32 m0, s%d, s32\ns_add_u32 m0, m0, %d\ns_add_u32 s35, s%d, %d\ns_add_u32 s35, s35, s53\nbuffer_load_dwordx4 v1, s[12:15], s35 offen lds" % (st, 4 * j * 1024, base, off)
            if 2 * j + 1 >= NT:
                lab = "K1_SK%s_%d" % (tag, len(a.L) * 100 + len(it) + uid[0]); uid[0] += 7
                x = "s_cmp_ge_u32 s28, 2\ns_cbranch_scc1 %s\n%s\n%s:" % (lab, x, lab)
            it.append(x)
        for rt in range(2):
            for ks in range(2):
                it.append("s_add_u32 m0, s%d, s54\ns_add_u32 m0, m0, %d\ns_add_u32 s35, s%d, %d\ns_add_u32 s35, s35, s53\nbuffer_load_dwordx4 v1, s[8:11], s35 offen lds" % (st, (rt * 2 + ks) * 1024, 33 + rt, ks * 1024))
        return it
    def rd_items(vb, va, ks, bset, aset):
        it = []
        for rt in range(2):
            it.append("ds_read_b128 %s, v%d offset:%d" % (v(aset + 4 * rt, 4), va, (rt * 2 + ks) * 1024))
        for ct in range(NT):
            it.append("ds_read_b128 %s, v%d offset:%d" % (v(bset + 4 * ct, 4), vb, (ct * 2 + ks) * 1024))
        return it
    def mf_list(bset, aset):
        L = []
        for ct in range(NT):
            for rt in range(2):
                Ar = v(aset + 4 * rt, 4); Br = v(bset + 4 * ct, 4); C = v(acc(rt, ct), 4)
                if ct < 2 * nu: L.append("v_mfma_f32_16x16x32_bf16 %s, %s, %s, %s" % (C, Ar, Br, C))
                else:           L.append("v_mfma_f32_16x16x32_bf16 %s, %s, %s, %s" % (C, Br, Ar, C))
        return L
    def set_addr():
        a("v_add_u32 v2, s50, v1"); a("v_add_u32 v3, s50, v7"); a("v_add_u32 v8, s51, v1"); a("v_add_u32 v9, s51, v7")
    def advance():
        a("s_mov_b32 s50, s51")
        a("s_add_u32 s51, s51, %d" % STG)
        a("s_cmp_eq_u32 s51, %d" % (NST * STG))
        a("s_cselect_b32 s51, 0, s51")
        a("s_add_u32 s53, s53, 2048")
        set_addr()
    a("s_mov_b32 s53, 0")
    for st in range(NST):
        a("s_mov_b32 s50, %d" % (st * STG))
        for x in dma_items(50): a(x)
        a("s_add_u32 s53, s53, 2048")
    a("s_mov_b32 s50, 0")
    a("s_mov_b32 s51, %d" % STG)
    set_addr()
    for r in range(2 * NT * 4): a("v_mov_b32 v%d, 0" % (ACC + r))
    a("s_waitcnt vmcnt(%d)" % (per * (NST - 1)))
    a("s_barrier")
    stamp(a, 1)
    for x in rd_items(2, 3, 0, B0, A0): a(x)
    a("s_mov_b32 s55, %d" % (10 - NST))
    a.lab("K1_LOOP" + tag)
    a("s_waitcnt lgkmcnt(0)")
    interleave(a, mf_list(B0, A0), rd_items(2, 3, 1, B1, A1))
    a("s_waitcnt vmcnt(%d) lgkmcnt(0)" % (per * (NST - 2)))
    a("s_barrier")
    interleave(a, mf_list(B1, A1), rd_items(8, 9, 0, B0, A0) + dma_items(50))
    advance()
    a("s_sub_u32 s55, s55, 1")
    a("s_cmp_lg_u32 s55, 0")
    a("s_cbranch_scc1 K1_LOOP" + tag)
    a("v_lshrrev_b32 v220, 3, v0")
    a("v_and_b32 v221, 7, v0")
    a("s_lshl_b32 s3, s68, 6")
    a("v_add_u32 v220, s3, v220")
    a("v_mul_u32_u24 v220, 1280, v220")
    a("v_lshl_add_u32 v220, v221, 4, v220")
    a("s_lshl_b32 s3, s69, 7")
    a("s_add_u32 s4, s3, %d" % (32 * 1280))
    a("s_add_u32 m0, s32, %d" % K1_W)
    a("s_mul_i32 s5, s2, 200")
    a("buffer_load_dwordx4 v220, s[76:79], s3 offen lds")
    a("s_add_u32 m0, s32, %d" % (K1_W + 4096))
    a("v_add_u32 v221, s5, v0")
    a("buffer_load_dwordx4 v220, s[76:79], s4 offen lds")
    a("v_lshlrev_b32 v220, 4, v221")
    a("s_add_u32 m0, s32, %d" % (K1_W + 8192))
    a("s_nop 0")
    a("buffer_load_dwordx4 v220, s[80:83], 0 offen lds")
    a("s_add_u32 m0, s32, %d" % (K1_W + 12288))
    a("s_nop 0")
    a("buffer_load_dwordx4 v220, s[84:87], 0 offen lds")
    for tl in range(NST - 1):
        a("s_waitcnt lgkmcnt(0)")
        interleave(a, mf_list(B0, A0), rd_items(2, 3, 1, B1, A1))
        a("s_waitcnt vmcnt(%d) lgkmcnt(0)" % (per * (NST - 2 - tl) + 4))
        a("s_barrier")
        interleave(a, mf_list(B1, A1), rd_items(8, 9, 0, B0, A0))
        advance()
    a("s_waitcnt lgkmcnt(0)")
    interleave(a, mf_list(B0, A0), rd_items(2, 3, 1, B1, A1))
    a("s_waitcnt lgkmcnt(0)")
    for m in mf_list(B1, A1): a(m)
    CU = lambda u: 108 + 12 * u + 48
    CU = lambda u: 144 + 12 * u - 36
    a("v_lshlrev_b32 v7, 6, v5")
    a("v_add_u32 v7, %d, v7" % K1_CB)
    a("s_lshl_b32 s3, s28, 3")
    a("v_add_u32 v8, s3, v6")
    a("v_mul_u32_u24 v8, %d, v8" % pitch)
    a("v_lshl_add_u32 v8, v5, 3, v8")
    a("v_add_u32 v9, %d, v8" % (4 * pitch))
    a("s_nop 7")
    for u in range(nu):
        for k in range(3):
            a("ds_read_b128 %s, v7 offset:%d" % (v(CU(u) + 4 * k, 4), u * 1024 + 16 * k))
    stamp(a, 2)
    a("s_barrier")
    a("s_waitcnt lgkmcnt(0)")
    UR = [(u, rt) for u in range(nu) for rt in range(2)]
    for u in range(nu):
        a("v_sub_f32 v%d, 0, v%d" % (CU(u) + 10, CU(u) + 6))
    for r in range(1, 4):
        for (u, rt) in UR:
            R = acc(rt, 2 * u) + r
            a("v_fmac_f32 v%d, v%d, v%d" % (R, CU(u) + 2, R - 1))
        for (u, rt) in UR:
            I = acc(rt, 2 * u + 1) + r
            a("v_fmac_f32 v%d, v%d, v%d" % (I, CU(u) + 2, I - 1))
        for (u, rt) in UR:
            R = acc(rt, 2 * u) + r; I = acc(rt, 2 * u + 1) + r
            a("v_fmac_f32 v%d, v%d, v%d" % (R, CU(u) + 10, I - 1))
        for (u, rt) in UR:
            R = acc(rt, 2 * u) + r; I = acc(rt, 2 * u + 1) + r
            a("v_fmac_f32 v%d, v%d, v%d" % (I, CU(u) + 6, R - 1))
    for (u, rt) in UR:
        a("ds_write2_b32 v%d, v%d, v%d offset0:%d offset1:%d" % (8 + rt, acc(rt, 2 * u) + 3, acc(rt, 2 * u + 1) + 3, u * 32, u * 32 + 1))
    TV = 168; S0 = 232; S1 = 234; L4 = 236; PUB = 240; VA = 244; VG = 245; BAD = 246; TMP = 247
    a("s_mul_i32 s3, s28, %d" % nl)
    a("v_add_u32 v%d, s3, v4" % TMP)
    a("v_lshlrev_b32 v%d, 3, v%d" % (VA, TMP))
    a("v_lshrrev_b32 v%d, 4, v%d" % (VG, TMP))
    a("v_lshlrev_b32 v%d, 12, v%d" % (VG, VG))
    a("v_and_b32 v%d, 15, v%d" % (BAD, TMP))
    a("v_lshl_add_u32 v%d, v%d, 4, v%d" % (VG, BAD, VG))
    a("v_lshlrev_b32 v%d, 6, v%d" % (TMP, TMP))
    a("v_add_u32 v%d, %d, v%d" % (TMP, K1_CB, TMP))
    a("s_lshl_b32 s42, s30, 12")
    a("s_lshl_b32 s3, s29, 8")
    a("s_add_u32 s3, s3, s42")
    a("s_waitcnt lgkmcnt(0)")
    a("s_barrier")
    stamp(a, 6)
    a("s_mov_b64 exec, 0x%x" % ((1 << nl) - 1))
    a("ds_read_b32 v%d, v%d offset:20" % (L4, TMP))
    a("ds_read_b32 v%d, v%d offset:36" % (L4 + 1, TMP))
    a("ds_read_b64 %s, v%d offset:40" % (v(L4 + 2, 2), TMP))
    for g in range(32):
        a("ds_read_b64 %s, v%d offset:%d" % (v(TV + 2 * g, 2), VA, K1_T + g * pitch))
    def hornerpk(src, dst, m, t):
        a(pk("fma", dst, m, src, t, sx=0))
        a(pk("fma", dst, m, src, dst, sx=1, sy='sw', neg=([1, 0, 0], [0, 0, 0])))
    a("v_mov_b32 v%d, 0" % S1)
    a("v_mov_b32 v%d, 0" % (S1 + 1))
    a("ds_write_b64 v%d, %s offset:%d" % (VA, v(S1, 2), K1_P))
    a("v_mov_b32 v%d, 1" % (PUB + 1))
    a("v_mov_b32 v%d, 1" % (PUB + 3))
    a("s_waitcnt lgkmcnt(1)")
    cur = TV
    for g in range(1, 32):
        a("ds_write_b64 v%d, %s offset:%d" % (VA, v(cur, 2), K1_P + g * pitch))
        nxt = S1 if cur != S1 else S0
        hornerpk(cur, nxt, L4, TV + 2 * g)
        cur = nxt
    a("v_mov_b32 v%d, v%d" % (PUB, cur))
    a("v_mov_b32 v%d, v%d" % (PUB + 2, cur + 1))
    a("buffer_store_dwordx4 %s, v%d, s[20:23], s3 offen sc0 sc1" % (v(PUB, 4), VG))
    stamp(a, 3)
    a("s_mov_b64 exec, -1")
    T3 = [248, 250, 252, 10, 2, 166]
    for p in (0, 2):
        for n, (u, rt) in enumerate(UR):
            a(pk("mul", T3[n], CU(u), acc(rt, 2 * u + 1) + p, sx=1))
        for n, (u, rt) in enumerate(UR):
            I = acc(rt, 2 * u + 1) + p
            a(pk("mul", I, CU(u), I, sx=0))
        for n, (u, rt) in enumerate(UR):
            I = acc(rt, 2 * u + 1) + p; R = acc(rt, 2 * u) + p
            a(pk("fma", I, CU(u), R, I, sx=1))
        for n, (u, rt) in enumerate(UR):
            R = acc(rt, 2 * u) + p
            a(pk("fma", R, CU(u), R, T3[n], sx=0, neg=([0, 0, 1], [0, 0, 1])))
    a("v_lshlrev_b32 v7, 4, v5")
    a("v_and_b32 v10, 1, v6")
    a("v_lshl_add_u32 v7, v10, 3, v7")
    a("v_lshrrev_b32 v10, 1, v6")
    a("v_lshl_add_u32 v7, v10, 8, v7")
    a("s_mul_i32 s36, s45, 49152")
    a("s_lshl_b32 s4, s46, 9")
    a("s_add_u32 s36, s36, s4")
    a("s_add_u32 s37, s36, 49152")
    a("s_mov_b32 s4, %s" % fhex(-1.4426950408889634))
    a("s_mov_b32 s5, s4")
    FT = [(rt, f) for rt in range(2) for f in range(nf)]
    def poll_loads(lab):
        for c in range(15):
            a("s_cmp_le_u32 s29, %d" % c)
            a("s_cbranch_scc1 " + lab)
            a("buffer_load_dwordx4 %s, v%d, s[20:23], s42 offen offset:%d sc0 sc1" % (v(TV + 4 * c, 4), VG, c * 256))
        a.lab(lab)
    for k in range(0, len(FT), 2):
        if k == PK * len(FT) // 8 // 2 * 2:
            a("s_mov_b64 exec, 0x%x" % ((1 << nl) - 1))
            poll_loads("K1_LD0" + tag)
            a("s_mov_b64 exec, -1")
        G = FT[k:k + 2]
        tt = [144, 156]
        for (rt, f), t in zip(G, tt):
            C = acc(rt, 2 * nu + f)
            a("v_cvt_pk_bf16_f32 v%d, v%d, v%d" % (t, C, C + 1))
            a("v_cvt_pk_bf16_f32 v%d, v%d, v%d" % (t + 1, C + 2, C + 3))
        for (rt, f), t in zip(G, tt):
            C = acc(rt, 2 * nu + f)
            a("v_lshlrev_b32 v%d, 16, v%d" % (C, t))
            a("v_and_b32 v%d, 0xffff0000, v%d" % (C + 1, t))
            a("v_lshlrev_b32 v%d, 16, v%d" % (C + 2, t + 1))
            a("v_and_b32 v%d, 0xffff0000, v%d" % (C + 3, t + 1))
        for (rt, f), t in zip(G, tt):
            C = acc(rt, 2 * nu + f)
            for h in (0, 2): a("v_pk_mul_f32 %s, %s, s[4:5]" % (v(t + 2 + h, 2), v(C + h, 2)))
        for (rt, f), t in zip(G, tt):
            for r in range(4): a("v_exp_f32 v%d, v%d" % (t + 2 + r, t + 2 + r))
        for (rt, f), t in zip(G, tt):
            for h in (0, 2): a("v_pk_add_f32 %s, %s, 1.0 op_sel_hi:[1,0]" % (v(t + 2 + h, 2), v(t + 2 + h, 2)))
        for (rt, f), t in zip(G, tt):
            for r in range(4): a("v_rcp_f32 v%d, v%d" % (t + 2 + r, t + 2 + r))
        for (rt, f), t in zip(G, tt):
            C = acc(rt, 2 * nu + f)
            for h in (0, 2): a(pk("mul", t + 2 + h, t + 2 + h, C + h))
        for (rt, f), t in zip(G, tt):
            a("v_cvt_pk_bf16_f32 v%d, v%d, v%d" % (t + 6, t + 2, t + 3))
            a("v_cvt_pk_bf16_f32 v%d, v%d, v%d" % (t + 7, t + 4, t + 5))
        for (rt, f), t in zip(G, tt):
            a("buffer_store_dwordx2 %s, v7, s[56:59], s%d offen offset:%d sc1" % (v(t + 6, 2), 36 + rt, f * 512))
    a("s_waitcnt vmcnt(%d)" % (len(FT) + 1))
    a("v_lshlrev_b32 v2, 4, v0")
    a("v_add_u32 v2, %d, v2" % (K1_W + 8192))
    a("ds_read_b128 v[144:147], v2")
    a("ds_read_b128 v[148:151], v2 offset:4096")
    a("s_mul_i32 s5, s2, 200")
    a("v_add_u32 v3, s5, v0")
    a("v_mul_u32_u24 v10, 0xcccd, v3")
    a("v_lshrrev_b32 v10, 22, v10")
    a("v_mul_u32_u24 v11, 80, v10")
    a("v_sub_u32 v11, v3, v11")
    a("v_lshrrev_b32 v2, 4, v10")
    a("v_mul_u32_u24 v2, 40960, v2")
    a("v_and_b32 v10, 15, v10")
    a("v_lshl_add_u32 v2, v10, 4, v2")
    a("v_lshl_add_u32 v2, v11, 9, v2")
    a("s_mov_b32 s70, 0x05040100")
    a("s_mov_b32 s71, 0x07060302")
    a("s_mov_b32 s72, 0x80008000")
    srd(a, 76, 6, WS_CRE, 2 * SZ_SQ)
    a("s_waitcnt lgkmcnt(0)")
    for k in range(4):
        a("v_xor_b32 v%d, s72, v%d" % (148 + k, 148 + k))
    for k in range(4):
        a("v_perm_b32 v%d, v%d, v%d, s70" % (152 + 2 * k, 148 + k, 144 + k))
        a("v_perm_b32 v%d, v%d, v%d, s71" % (153 + 2 * k, 148 + k, 144 + k))
    a("v_cmp_gt_u32 vcc, 200, v0")
    a("s_and_saveexec_b64 s[74:75], vcc")
    a("s_cbranch_execz K1_NOC2" + tag)
    a("buffer_store_dwordx4 v[152:155], v2, s[76:79], 0 offen" + PS)
    a("buffer_store_dwordx4 v[156:159], v2, s[76:79], 0 offen offset:256" + PS)
    a.lab("K1_NOC2" + tag)
    a("s_mov_b64 exec, -1")
    stamp(a, 9)
    a("s_mov_b64 exec, 0x%x" % ((1 << nl) - 1))
    a("s_mov_b32 s43, 0")
    a("s_waitcnt vmcnt(%d)" % (len(FT) - PK * len(FT) // 8 // 2 * 2 + (1 if STAMP else 0)))
    a("s_branch K1_LOADED2" + tag)
    a.lab("K1_POLL" + tag)
    poll_loads("K1_LOADED" + tag)
    a("s_waitcnt vmcnt(0)")
    a.lab("K1_LOADED2" + tag)
    a("v_mov_b32 v%d, 0" % BAD)
    for c in range(15):
        a("s_cmp_le_u32 s29, %d" % c)
        a("s_cbranch_scc1 K1_CHK" + tag)
        a("v_and_b32 v%d, v%d, v%d" % (TMP, TV + 4 * c + 1, TV + 4 * c + 3))
        a("v_xor_b32 v%d, 1, v%d" % (TMP, TMP))
        a("v_or_b32 v%d, v%d, v%d" % (BAD, BAD, TMP))
    a.lab("K1_CHK" + tag)
    a("v_cmp_ne_u32 vcc, 0, v%d" % BAD)
    a("s_add_u32 s43, s43, 1")
    a("s_cmp_ge_u32 s43, 0x40000")
    a("s_cbranch_scc1 K1_GOT" + tag)
    a("s_nop 4")
    a("s_cbranch_vccnz K1_POLL" + tag)
    a.lab("K1_GOT" + tag)
    stamp(a, 4)
    a("v_mov_b32 v%d, 0" % S0)
    a("v_mov_b32 v%d, 0" % (S0 + 1))
    for c in range(15):
        a("s_cmp_le_u32 s29, %d" % c)
        a("s_cbranch_scc1 K1_CARRY" + tag)
        a("v_mov_b32 v%d, v%d" % (TV + 4 * c + 1, TV + 4 * c + 2))
        hornerpk(S0, S1, L4 + 2, TV + 4 * c)
        a("v_mov_b32 v%d, v%d" % (S0, S1))
        a("v_mov_b32 v%d, v%d" % (S0 + 1, S1 + 1))
    a.lab("K1_CARRY" + tag)
    a("ds_write_b64 v%d, %s offset:%d" % (VA, v(S0, 2), K1_C))
    a("s_mov_b64 exec, -1")
    PV = 168; WV = 188; CV = 212
    a("s_lshl_b32 s3, s28, 6")
    a("s_add_u32 s3, s3, %d" % K1_PW)
    a("v_lshlrev_b32 v9, 8, v5")
    a("v_lshl_add_u32 v9, v6, 3, v9")
    a("v_add_u32 v9, s3, v9")
    for n, (u, rt) in enumerate(UR):
        a("ds_read_b64 %s, v9 offset:%d" % (v(WV + 2 * n, 2), u * 4096 + rt * 32))
    a("v_lshlrev_b32 v10, 3, v5")
    a("v_lshlrev_b32 v7, 6, v6")
    a("v_lshrrev_b32 v9, 2, v5")
    a("v_lshl_add_u32 v7, v9, 8, v7")
    a("v_and_b32 v9, 3, v5")
    a("v_lshl_add_u32 v7, v9, 2, v7")
    a("s_mul_i32 s44, s28, %d" % (2 * nu * 1024))
    a("s_add_u32 s44, s44, %d" % K1_O)
    a("v_add_u32 v7, s44, v7")
    a("v_add_u32 v11, s44, v1")
    a("s_mul_i32 s36, s45, 40960")
    a("s_lshl_b32 s4, s30, 10")
    a("s_add_u32 s36, s36, s4")
    a("s_add_u32 s37, s36, 40960")
    a("s_waitcnt lgkmcnt(0)")
    a("s_barrier")
    stamp(a, 7)
    for n, (u, rt) in enumerate(UR):
        a("ds_read_b64 %s, v8 offset:%d" % (v(PV + 2 * n, 2), K1_P + rt * 4 * pitch + u * 128))
    for u in range(nu):
        a("ds_read_b64 %s, v10 offset:%d" % (v(CV + 2 * u, 2), K1_C + u * 128))
    a("s_waitcnt lgkmcnt(0)")
    for n, (u, rt) in enumerate(UR):
        a(pk("fma", PV + 2 * n, WV + 2 * n, CV + 2 * u, PV + 2 * n, sx=0))
    for n, (u, rt) in enumerate(UR):
        a(pk("fma", PV + 2 * n, WV + 2 * n, CV + 2 * u, PV + 2 * n, sx=1, sy='sw', neg=([1, 0, 0], [0, 0, 0])))
    for n, (u, rt) in enumerate(UR):
        a(pk("mul", WV + 2 * n, CU(u), PV + 2 * n, sx=0))
    for n, (u, rt) in enumerate(UR):
        a(pk("fma", WV + 2 * n, CU(u), PV + 2 * n, WV + 2 * n, sx=1, sy='sw', neg=([1, 0, 0], [0, 0, 0])))
    for p in (0, 2):
        for n, (u, rt) in enumerate(UR):
            R = acc(rt, 2 * u) + p
            a(pk("fma", R, CU(u) + 2 + p, WV + 2 * n, R, sy=0))
        for n, (u, rt) in enumerate(UR):
            I = acc(rt, 2 * u + 1) + p
            a(pk("fma", I, CU(u) + 2 + p, WV + 2 * n, I, sy=1))
        for n, (u, rt) in enumerate(UR):
            R = acc(rt, 2 * u) + p
            a(pk("fma", R, CU(u) + 6 + p, WV + 2 * n, R, sy=1, neg=([1, 0, 0], [1, 0, 0])))
        for n, (u, rt) in enumerate(UR):
            I = acc(rt, 2 * u + 1) + p
            a(pk("fma", I, CU(u) + 6 + p, WV + 2 * n, I, sy=0))
    for r in range(4):
        for n, (u, rt) in enumerate(UR):
            R = acc(rt, 2 * u) + r; I = acc(rt, 2 * u + 1) + r
            a("v_cvt_pk_bf16_f32 v%d, v%d, v%d" % (R, R, I))
        for n, (u, rt) in enumerate(UR):
            a("ds_write_b32 v7, v%d offset:%d" % (acc(rt, 2 * u) + r, rt * nu * 1024 + u * 1024 + r * 16))
    a("s_waitcnt lgkmcnt(0)")
    for j in range(2 * nu):
        a("ds_read_b128 %s, v11 offset:%d" % (v(168 + 4 * j, 4), 1024 * j))
    for j in range(2 * nu):
        a("s_waitcnt lgkmcnt(%d)" % (2 * nu - 1 - j))
        a("buffer_store_dwordx4 %s, v1, s[24:27], s%d offen offset:%d sc1" % (v(168 + 4 * j, 4), 36 + j // nu, (j % nu) * 1024))
    a("s_cmp_ge_u32 s2, 240")
    a("s_cbranch_scc1 K1_NOW2" + tag)
    a("v_and_b32 v2, 15, v0")
    a("v_lshrrev_b32 v3, 4, v0")
    a("v_and_b32 v3, 7, v3")
    a("v_lshrrev_b32 v10, 7, v0")
    a("v_lshlrev_b32 v11, 10, v3")
    a("v_lshl_add_u32 v11, v2, 1, v11")
    a("v_lshl_add_u32 v11, v10, 5, v11")
    a("v_add_u32 v11, %d, v11" % K1_W)
    for h in range(2):
        for jj in range(8):
            a("ds_read_u16 v%d, v11 offset:%d" % (144 + 8 * h + jj, 128 * jj + 64 * h))
    a("v_mul_u32_u24 v10, 49152, v10")
    a("v_lshl_add_u32 v10, v3, 8, v10")
    a("v_lshl_add_u32 v10, v2, 4, v10")
    srd(a, 76, 6, WS_W2T, SZ_W)
    a("s_lshl_b32 s3, s68, 11")
    a("s_mul_i32 s4, s69, %d" % (4 * 49152))
    a("s_add_u32 s3, s3, s4")
    a("s_add_u32 s4, s3, %d" % (2 * 49152))
    a("s_waitcnt lgkmcnt(0)")
    for jj in range(8):
        a("v_lshl_or_b32 v%d, v%d, 16, v%d" % (160 + jj, 145 + 2 * jj, 144 + 2 * jj))
    a("buffer_store_dwordx4 v[160:163], v10, s[76:79], s3 offen" + PS)
    a("buffer_store_dwordx4 v[164:167], v10, s[76:79], s4 offen" + PS)
    a.lab("K1_NOW2" + tag)
    if STAMP:
        stamp(a, 8)
        a("s_waitcnt vmcnt(0)")
        stamp(a, 5)
    a("s_endpgm")

def gen_k1b(a):
    a.lab("k1_kernel")
    a("s_cmp_ge_u32 s2, 256")
    a("s_cbranch_scc1 K1_END")
    a("s_load_dwordx2 s[6:7], s[0:1], %d" % KA["ws"])
    a("s_load_dwordx2 s[84:85], s[0:1], %d" % KA["w2"])
    a("s_load_dwordx4 s[88:91], s[0:1], %d" % KA["cre"])
    a("v_lshrrev_b32 v1, 6, v0")
    a("v_and_b32 v4, 63, v0")
    a("s_nop 0")
    a("v_readfirstlane_b32 s28, v1")
    a("s_and_b32 s3, s2, 7")
    a("s_lshr_b32 s4, s2, 3")
    a("s_and_b32 s29, s3, 1")
    a("s_lshl_b32 s29, s29, 3")
    a("s_and_b32 s5, s4, 7")
    a("s_add_u32 s29, s29, s5")
    a("s_lshr_b32 s48, s4, 3")
    a("s_and_b32 s5, s3, 6")
    a("s_and_b32 s49, s48, 1")
    a("s_add_u32 s49, s49, s5")
    a("v_and_b32 v5, 15, v4")
    a("v_lshrrev_b32 v6, 4, v4")
    a("v_lshlrev_b32 v1, 4, v4")
    a("s_lshl_b32 s32, s28, 10")
    a("s_lshl_b32 s33, s29, 3")
    a("s_lshl_b32 s3, s28, 1")
    a("s_add_u32 s45, s33, s3")
    a("s_mul_i32 s33, s45, 20480")
    a("s_add_u32 s34, s33, 20480")
    a("s_lshl_b32 s54, s28, 12")
    a("s_add_u32 s54, s54, 24576")
    a("v_add_u32 v7, s54, v1")
    a("s_mul_i32 s30, s49, 3")
    a("s_mul_i32 s46, s49, %d" % NFA)
    a("s_lshl_b32 s3, s49, 1")
    a("s_add_u32 s3, s3, 24")
    a("s_mul_i32 s4, s49, %d" % (12 - NFA))
    a("s_add_u32 s4, s4, %d" % (8 * NFA))
    a("s_cmp_ge_u32 s48, 2")
    a("s_cselect_b32 s30, s3, s30")
    a("s_cselect_b32 s46, s4, s46")
    a("s_and_b32 s3, s28, 1")
    a("s_lshl_b32 s3, s3, 10")
    a("s_lshr_b32 s4, s28, 1")
    a("s_mul_i32 s31, s30, 20480")
    a("s_add_u32 s31, s31, s3")
    a("s_mul_i32 s5, s4, %d" % SZ_SQ)
    a("s_add_u32 s31, s31, s5")
    a("s_add_u32 s31, s31, %d" % WS_BRE)
    a("s_add_u32 s47, s46, s4")
    a("s_mul_i32 s47, s47, 20480")
    a("s_add_u32 s47, s47, s3")
    a("s_add_u32 s47, s47, %d" % WS_W1T)
    a("s_waitcnt lgkmcnt(0)")
    srd(a, 8, 6, WS_XN, SZ_XN)
    srd(a, 12, 6, 0, WS_ALL)
    srd(a, 16, 6, WS_CONST, SZ_CONST + SZ_PW)
    srd(a, 20, 6, WS_AGG, SZ_AGG)
    srd(a, 24, 6, WS_H, SZ_H)
    srd(a, 56, 6, WS_H1, SZ_H1)
    stamp_init(a); stamp(a, 0)
    srd(a, 76, 84, 0, SZ_W)
    srd(a, 80, 88, 0, SZ_SQ)
    srd(a, 84, 90, 0, SZ_SQ)
    a("s_mul_hi_u32 s68, s2, 0x%x" % ((2**32 + 9) // 10))
    a("s_mul_i32 s69, s68, 10")
    a("s_sub_u32 s69, s2, s69")
    a("s_cmp_ge_u32 s48, 2")
    a("s_cbranch_scc1 K1_TYPEB")
    body(a, 3, NFA, "A")
    a.lab("K1_TYPEB")
    body(a, 2, 12 - NFA, "B")
    a.lab("K1_END")
    a("s_endpgm")
```
